```python
import torch

def _softmax(x, axis=-1):
    return torch.softmax(x, dim=axis)
def _gelu(x):
    return torch.nn.functional.gelu(x, approximate="tanh")
def _silu(x):
    return torch.nn.functional.silu(x)
def _sigmoid(x):
    return torch.sigmoid(x)
def _layernorm(x, axis=-1, eps=1e-5):
    m = x.mean(dim=axis, keepdim=True)
    v = x.var(dim=axis, keepdim=True, unbiased=False)
    return (x - m) / torch.sqrt(v + eps)
def _scatter_add(tgt, idx, src, axis=0):
    return tgt.clone().index_add_(axis, idx, src)
def _segment_sum(src, seg, n):
    out = torch.zeros((n,) + src.shape[1:], dtype=src.dtype)
    return out.index_add_(0, seg, src)
def _pad(x, pw):
    flat = tuple(v for pair in reversed(pw) for v in pair)
    return torch.nn.functional.pad(x, flat)

kernel_name = 'sequential_preLN__spectral_gfnet__geglu_ffn__prompt'

def setup_inputs():

    _w = (lambda a: (lambda t: t.to(torch.bfloat16) if t.is_floating_point() else t)(torch.as_tensor(a)))
    def _A_setup():
        B, S, D = 1, 2048, 640
        Df = D // 2 + 1
        return {
            "x": _w((lambda *s: torch.randn(*s, dtype=torch.bfloat16) * 0.05)(B, S, D)),
            "w_r": _w((lambda *s: torch.randn(*s, dtype=torch.bfloat16) * 0.4)(S, Df) * 0.02),
            "w_i": _w((lambda *s: torch.randn(*s, dtype=torch.bfloat16) * 0.4)(S, Df) * 0.02),
        }
    _A_in = _A_setup()

    def _B_setup():
        B, S, D, F = 1, 2048, 640, 1728
        return {
            "x": _w((lambda *s: torch.randn(*s, dtype=torch.bfloat16) * 0.05)(B, S, D)),
            "w_gate": _w((lambda *s: torch.randn(*s, dtype=torch.bfloat16) * 0.05)(D, F)),
            "w_up": _w((lambda *s: torch.randn(*s, dtype=torch.bfloat16) * 0.05)(D, F)),
            "w_down": _w((lambda *s: torch.randn(*s, dtype=torch.bfloat16) * 0.05)(F, D)),
        }
    _B_in = _B_setup()

    return {
        "A_x": _A_in["x"],
        "A_w_r": _A_in["w_r"],
        "A_w_i": _A_in["w_i"],
        "B_x": _B_in["x"],
        "B_w_gate": _B_in["w_gate"],
        "B_w_up": _B_in["w_up"],
        "B_w_down": _B_in["w_down"],
    }

def reference(A_x, A_w_r, A_w_i, B_x, B_w_gate, B_w_up, B_w_down):
    def _A_ref(x, w_r, w_i):
        B, S, D = x.shape
        X = (lambda x, axes=(-2,-1): torch.fft.rfft2(x.float(), dim=axes))(x, axes=(-2, -1))
        W = w_r + 1j * w_i
        X = X * W
        y = (lambda x, s, axes=(-2,-1): torch.fft.irfft2(x, s=s, dim=axes).to(torch.bfloat16))(X, (S, D), axes=(-2, -1))
        return y

    def _B_ref(x, w_gate, w_up, w_down):
        return (_gelu(x @ w_gate) * (x @ w_up)) @ w_down

    x = A_x
    h = x + _A_ref(_layernorm(x, axis=-1), A_w_r, A_w_i)
    h2 = h + _B_ref(_layernorm(h, axis=-1), B_w_gate, B_w_up, B_w_down)
    return h2
```

```python
import re

TRANS = ('v_exp_f32','v_log_f32','v_rcp_f32','v_rsq_f32','v_sqrt_f32','v_sin_f32','v_cos_f32',
         'v_rcp_iflag_f32','v_exp_f16','v_rcp_f16')

def regs_of(tok):
    t = tok.strip()
    t = t.replace('|','')
    m = re.match(r'^-?(?:abs\()?([vas])(\d+)\)?$', t)
    if m: return [(m.group(1), int(m.group(2)))]
    m = re.match(r'^-?(?:abs\()?([vas])\[(\d+):(\d+)\]\)?$', t)
    if m: return [(m.group(1), i) for i in range(int(m.group(2)), int(m.group(3))+1)]
    if t == 'vcc': return [('s','vcc')]
    if t == 'exec': return [('s','exec')]
    if t == 'm0': return [('s','m0')]
    return []

class Ins:
    __slots__=('text','mn','kind','passes','wr','rd','srcc','srcab','dpp','ws','opsel','wide_store')

def parse(text):
    I = Ins(); I.text = text
    body = text.split(';')[0].strip()
    parts = body.split(None, 1)
    mn = parts[0]; I.mn = mn
    rest = parts[1] if len(parts) > 1 else ''
    ops = []; depth = 0; cur = ''
    for ch in rest:
        if ch == '[': depth += 1
        if ch == ']': depth -= 1
        if ch == ',' and depth == 0:
            ops.append(cur.strip()); cur = ''
        else: cur += ch
    if cur.strip(): ops.append(cur.strip())
    mods = ''
    if ops:
        sp = ops[-1].split()
        ops[-1] = sp[0] if sp else ''
        mods = ' '.join(sp[1:])
    I.wr = set(); I.rd = set(); I.srcc = set(); I.srcab = set(); I.passes = 0
    I.dpp = any(k in mods for k in ('quad_perm','row_','wave_')) and mn.startswith('v_')
    I.opsel = ('op_sel' in mods) and not mn.startswith('v_pk') and not mn.startswith('v_mfma')
    I.ws = 1; I.wide_store = False
    R = [regs_of(o) for o in ops]
    if mn == 's_nop':
        I.kind = 'nop'; I.ws = int(ops[0], 0) + 1
    elif mn.startswith('v_mfma'):
        I.kind = 'mfma'
        I.passes = 8 if '32x32' in mn else 4
        I.wr = set(R[0]); I.srcab = set(R[1]) | set(R[2]); I.srcc = set(R[3]) if len(R) > 3 else set()
        I.rd = I.srcab | I.srcc
    elif mn.startswith('v_'):
        I.kind = 'trans' if mn.replace('_e32','').replace('_e64','') in TRANS else 'valu'
        if mn.startswith('v_permlane'):
            I.wr = set(R[0]) | set(R[1]); I.rd = set(I.wr)
        elif mn.startswith('v_cmpx'):
            I.wr = set(R[0]) | {('s','exec')}
            for r in R[1:]: I.rd |= set(r)
        elif mn.startswith(('v_add_co','v_sub_co','v_addc_co','v_subb_co','v_div_scale')):
            I.wr = set(R[0]) | set(R[1])
            for r in R[2:]: I.rd |= set(r)
        else:
            I.wr = set(R[0])
            for r in R[1:]: I.rd |= set(r)
            if mn.startswith(('v_fmac','v_mac','v_dot2c','v_pk_fmac','v_writelane')) or I.dpp:
                I.rd |= set(R[0])
    elif mn.startswith(('buffer_load','global_load')):
        I.kind = 'vmem'
        if 'lds' in mods.split() or '_lds_' in mn:
            for r in R: I.rd |= set(r)
            I.rd.add(('s','m0')); I.kind = 'vmem_lds'
        else:
            I.wr = set(R[0])
            for r in R[1:]: I.rd |= set(r)
    elif mn.startswith(('buffer_store','global_store','buffer_atomic','global_atomic')):
        I.kind = 'vmem'
        for r in R: I.rd |= set(r)
        if 'x4' in mn or 'x3' in mn:
            I.wide_store = True
            I.srcab = set(R[0]) if mn.startswith('buffer') else set(R[1])
    elif mn.startswith('ds_'):
        I.kind = 'ds'
        if mn.startswith(('ds_read','ds_bpermute','ds_permute','ds_swizzle')):
            I.wr = set(R[0])
            for r in R[1:]: I.rd |= set(r)
        else:
            for r in R: I.rd |= set(r)
    elif mn.startswith('s_'):
        I.kind = 'salu'
        if mn.startswith(('s_cmp','s_waitcnt','s_barrier','s_branch','s_cbranch','s_endpgm','s_setprio','s_sleep')):
            for r in R: I.rd |= set(r)
        elif mn.startswith('s_load'):
            I.kind = 'smem'; I.wr = set(R[0])
            for r in R[1:]: I.rd |= set(r)
        else:
            I.wr = set(R[0]) if R else set()
            for r in R[1:]: I.rd |= set(r)
            if 'saveexec' in mn: I.wr.add(('s','exec'))
    else:
        I.kind = 'other'
    return I

def need(prev, cur):
    n = 0
    pv = prev.kind in ('valu','trans')
    cv = cur.kind in ('valu','trans')
    wv = {r for r in prev.wr if r[0] in 'va'}
    wsg = {r for r in prev.wr if r[0] == 's'}
    if pv:
        if cur.kind == 'mfma' and wv & cur.rd: n = max(n, 2)
        if cv and cur.dpp and wv & cur.rd: n = max(n, 2)
        if cur.mn.startswith('v_permlane') and wv & cur.rd: n = max(n, 2)
        if cur.mn.startswith(('v_readlane','v_readfirstlane')) and wv & cur.rd: n = max(n, 1)
        if prev.kind == 'trans' and cur.kind in ('valu','mfma','vmem','ds','vmem_lds') and wv & cur.rd: n = max(n, 1)
        if prev.opsel and cv and wv & (cur.rd | cur.wr): n = max(n, 1)
        if wsg:
            if cur.kind in ('vmem','vmem_lds') and wsg & cur.rd: n = max(n, 5)
            if cv and wsg & cur.rd:
                n = max(n, 4 if cur.mn.startswith(('v_readlane','v_writelane')) else 2)
            if ('s','exec') in wsg:
                if cur.kind == 'mfma': n = max(n, 4)
                if cv and cur.dpp: n = max(n, 5)
                if cur.mn.startswith(('v_readlane','v_readfirstlane','v_writelane','v_permlane')): n = max(n, 4)
            if cur.kind == 'salu' and wsg & cur.rd: n = max(n, 1)
    if prev.kind == 'mfma':
        p = prev.passes
        far = {4: 8, 8: 12}[p]; ov = {4: 6, 8: 10}[p]; war = {4: 3, 8: 7}[p]
        if cur.kind == 'mfma':
            if prev.wr & cur.srcab: n = max(n, far)
            if prev.wr & cur.srcc:
                if not (prev.wr == cur.srcc and cur.passes == p): n = max(n, ov)
            elif prev.wr & cur.wr: n = max(n, far)
        else:
            if prev.wr & (cur.rd | cur.wr): n = max(n, far)
            if cv and prev.srcc & cur.wr: n = max(n, war)
    if prev.wide_store and prev.srcab & cur.wr:
        n = max(n, 2)
    if prev.kind == 'salu' and ('s','m0') in prev.wr and cur.kind == 'vmem_lds': n = max(n, 1)
    return n

class Asm:
    def __init__(self):
        self.lines = []
        self.hist = []
        self.nnop = 0
    def raw(self, s):
        self.lines.append(s)
    def comment(self, s):
        self.lines.append('    ; ' + s)
    def label(self, name):
        self.flush()
        self.lines.append(name + ':')
    def flush(self):
        mx = 0; dist = 0
        for I in reversed(self.hist):
            req = 0
            if I.kind == 'mfma': req = {4: 8, 8: 12}[I.passes]
            elif I.kind in ('valu','trans'): req = 5
            elif I.wide_store: req = 2
            elif I.kind == 'salu': req = 1
            mx = max(mx, req - dist)
            dist += I.ws
            if dist > 16: break
        if mx > 0: self._nop(mx)
        self.hist = []
    def _nop(self, n):
        while n > 0:
            k = min(n, 16)
            I = parse('s_nop %d' % (k-1))
            self.lines.append('    s_nop %d' % (k-1)); self.hist.append(I); n -= k; self.nnop += 1
    def __call__(self, text):
        for t in text.strip().split('\n'):
            t = t.strip()
            if not t: continue
            if t.startswith(';'):
                self.lines.append('    ' + t); continue
            I = parse(t)
            dist = 0; req = 0
            for P in reversed(self.hist):
                r = need(P, I) - dist
                if r > req: req = r
                dist += P.ws
                if dist > 16: break
            if req > 0: self._nop(req)
            if I.mn.startswith(('s_branch','s_cbranch')):
                self.flush()
            self.lines.append('    ' + t)
            self.hist.append(I)
            if len(self.hist) > 40: self.hist = self.hist[-40:]
    def text(self):
        return '\n'.join(self.lines) + '\n'

class Regs:
    def __init__(self, start=1):
        self.n = start; self.hi = start
    def a(self, cnt=1, align=1):
        if cnt >= 2: align = max(align, 2)
        if cnt >= 4: align = max(align, 4)
        self.n = (self.n + align - 1) // align * align
        r = self.n; self.n += cnt; self.hi = max(self.hi, self.n)
        return r
    def mark(self): return self.n
    def release(self, m): self.n = m

def vr(b, n=1):
    return 'v%d' % b if n == 1 else 'v[%d:%d]' % (b, b+n-1)
def sr(b, n=1):
    return 's%d' % b if n == 1 else 's[%d:%d]' % (b, b+n-1)
import struct
def f32(x):
    return '0x%08x' % struct.unpack('<I', struct.pack('<f', x))[0]
```

```python
from asmlib import *
import math
Z1_OFF=0; Z2_OFF=0x280000; TA_OFF=0x500000; TCOLS=324; WMAX_OFF=0x7A0000
H_OFF=0x800000; LN2_OFF=0xA80000; GU_OFF=0xD00000
ZB=320*8192; XB=2048*1280; WB=2048*642; GUB=2048*3456; WGB=640*3456; WDB=1728*1280

def kstart(a, name, nwg):
    a.hist = []
    a.raw('.globl %s\n.p2align 8\n.type %s,@function' % (name, name))
    a.label(name)
    a('s_cmp_ge_u32 s2, %d' % nwg)
    a('s_cbranch_scc1 %s_end' % name)
def kend(a, name):
    a.label(name + '_end')
    a('s_endpgm')
def ldptr(a, s, koff):
    a('s_load_dwordx2 %s, s[0:1], %d' % (sr(s,2), koff))
def mksrd(a, s, nbytes, add=0, src=None):
    b = s if src is None else src
    if add:
        a('s_add_u32 s%d, s%d, 0x%x' % (s, b, add))
        a('s_addc_u32 s%d, s%d, 0' % (s+1, b+1))
    elif src is not None:
        a('s_mov_b32 s%d, s%d' % (s, b)); a('s_mov_b32 s%d, s%d' % (s+1, b+1))
    a('s_mov_b32 s%d, 0x%x' % (s+2, nbytes))
    a('s_mov_b32 s%d, 0x00020000' % (s+3))

def cs(a, vp, N, vc, vs, tmp=None):
    t = vs if tmp is None else tmp
    a('v_cvt_f32_u32 v%d, v%d' % (t, vp))
    a('v_mul_f32 v%d, %s, v%d' % (t, f32(1.0/N), t))
    a('v_cos_f32 v%d, v%d' % (vc, t))
    a('v_sin_f32 v%d, v%d' % (vs, t))

def wave_reduce(a, v, t, op='v_add_f32'):
    for m in ('quad_perm:[1,0,3,2]','quad_perm:[2,3,0,1]','row_half_mirror','row_mirror'):
        a('%s_dpp v%d, v%d, v%d %s row_mask:0xf bank_mask:0xf' % (op, v, v, v, m))
    for sw in ('v_permlane16_swap_b32','v_permlane32_swap_b32'):
        a('v_mov_b32 v%d, v%d' % (t, v))
        a('%s v%d, v%d' % (sw, v, t))
        a('%s v%d, v%d, v%d' % (op, v, v, t))

def bfround(a, v):
    a('v_cvt_pk_bf16_f32 v%d, v%d, v%d' % (v, v, v))
    a('v_lshlrev_b32 v%d, 16, v%d' % (v, v))

def layernorm(a, R, xf, outp):
    mk = R.mark()
    s = R.a(); t = R.a(); m = R.a(); q = R.a(); e = R.a(); q2 = R.a(); e2 = R.a()
    a('v_add_f32 v%d, v%d, v%d' % (s, xf, xf+1))
    for i in range(2,10): a('v_add_f32 v%d, v%d, v%d' % (s, s, xf+i))
    wave_reduce(a, s, t)
    a('v_mul_f32 v%d, %s, v%d' % (m, f32(1.0/640), s))
    a('v_sub_f32 v%d, v%d, v%d' % (t, xf, m))
    a('v_mul_f32 v%d, v%d, v%d' % (s, t, t))
    for i in range(1,10):
        a('v_sub_f32 v%d, v%d, v%d' % (t, xf+i, m))
        a('v_fmac_f32 v%d, v%d, v%d' % (s, t, t))
    wave_reduce(a, s, t)
    a('v_mul_f32 v%d, %s, v%d' % (s, f32(1.0/640), s))
    bfround(a, s); bfround(a, m)
    a('v_add_f32 v%d, %s, v%d' % (s, f32(1e-5), s))
    bfround(a, s)
    a('v_sqrt_f32 v%d, v%d' % (s, s))
    bfround(a, s)
    a('v_rcp_f32 v%d, v%d' % (t, s))
    for i in range(5):
        x0 = xf+2*i; x1 = x0+1
        a('v_sub_f32 v%d, v%d, v%d' % (x0, x0, m))
        a('v_sub_f32 v%d, v%d, v%d' % (x1, x1, m))
        a('v_cvt_pk_bf16_f32 v%d, v%d, v%d' % (x1, x0, x1))
        a('v_lshlrev_b32 v%d, 16, v%d' % (x0, x1))
        a('v_and_b32 v%d, 0xffff0000, v%d' % (x1, x1))
        a('v_mul_f32 v%d, v%d, v%d' % (q, x0, t))
        a('v_mul_f32 v%d, v%d, v%d' % (q2, x1, t))
        a('v_fma_f32 v%d, -v%d, v%d, v%d' % (e, q, s, x0))
        a('v_fma_f32 v%d, -v%d, v%d, v%d' % (e2, q2, s, x1))
        a('v_fmac_f32 v%d, v%d, v%d' % (q, e, t))
        a('v_fmac_f32 v%d, v%d, v%d' % (q2, e2, t))
        a('v_cvt_pk_bf16_f32 v%d, v%d, v%d' % (outp+i, q, q2))
    R.release(mk)

def mfma16(a, d, A, B, c, ty='f16'):
    a('v_mfma_f32_16x16x32_%s %s, %s, %s, %s' % (ty, vr(d,4), vr(A,4), vr(B,4), '0' if c is None else vr(c,4)))

def cmul_tw(a, dr, di, tc, ts, outr, outi, sign):
    a('v_mul_f32 v%d, v%d, v%d' % (outr, dr, tc))
    a('v_mul_f32 v%d, v%d, v%d' % (outi, di, tc))
    if sign < 0:
        a('v_fmac_f32 v%d, v%d, v%d' % (outr, di, ts))
        a('v_fma_f32 v%d, -v%d, v%d, v%d' % (outi, dr, ts, outi))
    else:
        a('v_fma_f32 v%d, -v%d, v%d, v%d' % (outr, di, ts, outr))
        a('v_fmac_f32 v%d, v%d, v%d' % (outi, dr, ts))

def load_wmax_ef(a, R, srd, lane, out):
    mk = R.mark()
    d = R.a(4); t = R.a()
    a('v_lshlrev_b32 v%d, 4, v%d' % (t, lane))
    a('buffer_load_dwordx4 %s, v%d, %s, 0 offen' % (vr(d,4), t, sr(srd,4)))
    return (d, t, mk)
def finish_wmax_ef(a, R, st, out):
    d, t, mk = st
    a('v_max_u32 v%d, v%d, v%d' % (d, d, d+1))
    a('v_max3_u32 v%d, v%d, v%d, v%d' % (out, d, d+2, d+3))
    wave_reduce(a, out, t, 'v_max_u32')
    a('v_lshrrev_b32 v%d, 7, v%d' % (out, out))
    a('v_max_u32 v%d, 8, v%d' % (out, out))
    a('v_min_u32 v%d, 0xfa, v%d' % (out, out))

def kdesc(name, vgpr, sgpr=96):
    v = (vgpr + 7)//8*8
    return '''.p2align 6
.amdhsa_kernel %s
  .amdhsa_next_free_vgpr %d
  .amdhsa_next_free_sgpr %d
  .amdhsa_accum_offset %d
  .amdhsa_group_segment_fixed_size 0
  .amdhsa_kernarg_size 80
  .amdhsa_user_sgpr_count 2
  .amdhsa_user_sgpr_kernarg_segment_ptr 1
  .amdhsa_system_sgpr_workgroup_id_x 1
.end_amdhsa_kernel
''' % (name, v, sgpr, v)
```

```python
from common import *

def row_setup(a, R):
    lane = R.a(); l15 = R.a(); g = R.a(); xo = R.a()
    a('v_lshrrev_b32 v%d, 6, v0' % lane)
    a('v_readfirstlane_b32 s3, v%d' % lane)
    a('v_and_b32 v%d, 63, v0' % lane)
    a('v_and_b32 v%d, 15, v0' % l15)
    a('v_bfe_u32 v%d, v0, 4, 2' % g)
    a('v_mul_u32_u24 v%d, 320, v%d' % (xo, g))
    a('v_lshl_add_u32 v%d, v%d, 2, v%d' % (xo, l15, xo))
    a('s_lshr_b32 s22, s2, 5')
    a('s_and_b32 s23, s2, 31')
    a('s_lshl_b32 s20, s22, 3')
    a('s_add_u32 s20, s20, s3')
    a('s_lshl_b32 s20, s20, 5')
    a('s_add_u32 s20, s20, s23')
    a('s_mul_i32 s20, s20, 1280')
    a('s_lshl_b32 s21, s23, 8')
    a('s_lshl_b32 s22, s22, 5')
    a('s_add_u32 s21, s21, s22')
    a('s_mul_i32 s24, s3, 1280')
    return lane, l15, g, xo

def gen_k1(a):
    name = 'k1_kernel'
    R = Regs(1)
    kstart(a, name, 256)
    ldptr(a, 4, 0); ldptr(a, 8, 8); ldptr(a, 12, 16); ldptr(a, 16, 72)
    lane, l15, g, xo = row_setup(a, R)
    a('s_waitcnt lgkmcnt(0)')
    mksrd(a, 28, TCOLS*8192, TA_OFF, 16)
    mksrd(a, 32, 1024, WMAX_OFF, 16)
    mksrd(a, 4, XB); mksrd(a, 8, WB); mksrd(a, 12, WB); mksrd(a, 16, ZB)
    xd = R.a(5)
    for i in range(5):
        a('buffer_load_dword v%d, v%d, s[4:7], s20 offen offset:%d' % (xd+i, xo, 64*i))
    wr = R.a(8,4); wi = R.a(8,4); wdst = R.a(); tt = R.a(); wcol = R.a()
    a('v_mov_b32 v%d, 0' % wdst)
    a('s_mov_b32 s48, 0')
    a('s_and_b32 s25, s3, 3')
    a('s_cmp_eq_u32 s25, 3')
    a('s_cbranch_scc1 k1_now1')
    a('v_and_b32 v%d, 255, v0' % tt)
    a('v_min_u32 v%d, 161, v%d' % (tt, tt))
    a('s_and_b32 s26, s2, 63')
    a('s_lshr_b32 s27, s2, 6')
    a('s_lshl_b32 s36, s27, 8')
    a('s_add_u32 s36, s36, s26')
    a('s_cmp_ge_u32 s3, 4')
    a('s_cselect_b32 s37, 1, 0')
    for idx in range(8):
        a('s_add_u32 s38, s36, %d' % (1024*(idx>>2) + 64*(idx&3)))
        a('s_sub_u32 s39, 2048, s38')
        a('s_and_b32 s39, s39, 2047')
        a('s_cmp_eq_u32 s37, 1')
        a('s_cselect_b32 s38, s39, s38')
        a('s_mul_i32 s%d, s38, 642' % (40+idx))
    a('s_lshr_b32 s38, s26, 4')
    a('s_lshl_b32 s38, s38, 6')
    a('s_lshl_b32 s39, s27, 4')
    a('s_add_u32 s38, s38, s39')
    a('s_and_b32 s39, s26, 15')
    a('s_add_u32 s38, s38, s39')
    a('s_lshl_b32 s48, s38, 5')
    a('s_cmp_eq_u32 s37, 1')
    a('s_cselect_b32 s38, 320, 0')
    a('s_cselect_b32 s39, -1, 1')
    a('s_cselect_b32 s49, 0, 320')
    a('s_cselect_b32 s50, 162, 0')
    a('s_sub_u32 s51, 323, s50')
    a('v_mul_lo_u32 v%d, v%d, s39' % (wcol, tt))
    a('v_add_u32 v%d, s38, v%d' % (wcol, wcol))
    a('v_add_u32 v%d, s50, v%d' % (wdst, tt))
    a('v_cmp_eq_u32 vcc, 161, v%d' % tt)
    a('v_mov_b32 v%d, s49' % tt)
    a('v_cndmask_b32 v%d, v%d, v%d, vcc' % (wcol, wcol, tt))
    a('v_mov_b32 v%d, s51' % tt)
    a('v_cndmask_b32 v%d, v%d, v%d, vcc' % (wdst, wdst, tt))
    a('v_lshlrev_b32 v%d, 1, v%d' % (wcol, wcol))
    a('v_lshlrev_b32 v%d, 13, v%d' % (wdst, wdst))
    for idx in range(8):
        a('buffer_load_ushort v%d, v%d, s[8:11], s%d offen' % (wr+idx, wcol, 40+idx))
        a('buffer_load_ushort v%d, v%d, s[12:15], s%d offen' % (wi+idx, wcol, 40+idx))
    a.label('k1_now1')
    B0 = {}; B1 = {}
    for cb in range(2):
        for c in range(2):
            B0[cb,c] = R.a(4); B1[cb,c] = R.a(4)
    A1 = R.a(4); A0 = R.a(4)
    Are = R.a(4); Aim = R.a(4)
    twc = R.a(8); tws = R.a(8)
    p = R.a(); k1 = R.a(); n1 = R.a(); c0 = R.a(); s0 = R.a(); c1 = R.a(); s1 = R.a()
    for cb in range(2):
        a('v_add_u32 v%d, %d, v%d' % (k1, 16*cb, l15))
        a('v_mul_u32_u24 v%d, 5, v%d' % (n1, g))
        a('v_mul_u32_u24 v%d, v%d, v%d' % (p, n1, k1))
        for i in range(5):
            cs(a, p, 20, c0, s0)
            if i < 4: a('v_add_u32 v%d, v%d, v%d' % (p, p, k1))
            a('v_mul_f32 v%d, 0.25, v%d' % (c0, c0)) if False else None
            a('v_mul_f32 v%d, %s, v%d' % (c0, f32(0.25), c0))
            a('v_mul_f32 v%d, %s, v%d' % (s0, f32(0.25), s0))
            dre = B0[cb,0]+i if i < 4 else B1[cb,0]
            dim = B0[cb,1]+i if i < 4 else B1[cb,1]
            a('v_cvt_pk_f16_f32 v%d, v%d, v%d' % (dre, c0, s0))
            a('v_cvt_pk_f16_f32 v%d, -v%d, v%d' % (dim, s0, c0))
        for c in range(2):
            for i in range(1,4): a('v_mov_b32 v%d, 0' % (B1[cb,c]+i))
        a('v_lshlrev_b32 v%d, 2, v%d' % (n1, g))
        a('v_mul_u32_u24 v%d, v%d, v%d' % (p, n1, k1))
        for r in range(4):
            cs(a, p, 320, twc+4*cb+r, tws+4*cb+r)
            if r < 3: a('v_add_u32 v%d, v%d, v%d' % (p, p, k1))
    for i in range(1,4): a('v_mov_b32 v%d, 0' % (A1+i))
    a('v_mul_u32_u24 v%d, v%d, v%d' % (p, n1, l15))
    for jj in range(2):
        for (cc, ss) in ((c0,s0),(c1,s1)):
            a('v_and_b32 v%d, 15, v%d' % (k1, p))
            cs(a, k1, 16, cc, ss)
            a('v_add_u32 v%d, v%d, v%d' % (p, p, l15))
            a('v_mul_f32 v%d, %s, v%d' % (cc, f32(0.25), cc))
            a('v_mul_f32 v%d, %s, v%d' % (ss, f32(0.25), ss))
        a('v_cvt_pk_f16_f32 v%d, v%d, v%d' % (Are+jj, c0, c1))
        a('v_cvt_pk_f16_f32 v%d, v%d, v%d' % (Are+2+jj, s0, s1))
        a('v_cvt_pk_f16_f32 v%d, -v%d, -v%d' % (Aim+jj, s0, s1))
        a('v_mov_b32 v%d, v%d' % (Aim+2+jj, Are+jj))
    xf = R.a(10); up = R.a(5)
    a('s_cmp_eq_u32 s25, 3')
    a('s_cbranch_scc1 k1_w0')
    a('s_waitcnt vmcnt(16)')
    a('s_branch k1_w1')
    a.label('k1_w0')
    a('s_waitcnt vmcnt(0)')
    a.label('k1_w1')
    for i in range(5):
        a('v_lshlrev_b32 v%d, 16, v%d' % (xf+2*i, xd+i))
        a('v_and_b32 v%d, 0xffff0000, v%d' % (xf+2*i+1, xd+i))
    layernorm(a, R, xf, up)
    for i in range(5):
        a('v_lshlrev_b32 v%d, 16, v%d' % (c0, up+i))
        a('v_and_b32 v%d, 0xffff0000, v%d' % (s0, up+i))
        a('v_cvt_pk_f16_f32 v%d, v%d, v%d' % (A0+i if i < 4 else A1, c0, s0))
    D = {}
    for cb in range(2):
        for c in range(2):
            D[cb,c] = R.a(4)
            mfma16(a, D[cb,c], A0, B0[cb,c], None)
    for cb in range(2):
        for c in range(2):
            mfma16(a, D[cb,c], A1, B1[cb,c], D[cb,c])
    B2 = [R.a(4), R.a(4)]
    tr_ = R.a(4); ti_ = R.a(4)
    for cb in range(2):
        for r in range(4):
            cmul_tw(a, D[cb,0]+r, D[cb,1]+r, twc+4*cb+r, tws+4*cb+r, tr_+r, ti_+r, -1)
        a('v_cvt_pk_f16_f32 v%d, v%d, v%d' % (B2[cb], tr_, tr_+1))
        a('v_cvt_pk_f16_f32 v%d, v%d, v%d' % (B2[cb]+1, tr_+2, tr_+3))
        a('v_cvt_pk_f16_f32 v%d, v%d, v%d' % (B2[cb]+2, ti_, ti_+1))
        a('v_cvt_pk_f16_f32 v%d, v%d, v%d' % (B2[cb]+3, ti_+2, ti_+3))
    for cb in range(2):
        mfma16(a, D[cb,0], Are, B2[cb], None)
        mfma16(a, D[cb,1], Aim, B2[cb], None)
    la = R.a()
    a('v_add_u32 v%d, s24, v%d' % (la, xo))
    for cb in range(2):
        for r in range(4):
            a('v_cvt_pk_f16_f32 v%d, v%d, v%d' % (D[cb,0]+r, D[cb,0]+r, D[cb,1]+r))
    for r in range(4):
        a('ds_write_b32 v%d, v%d offset:%d' % (la, D[0,0]+r, 80*r))
    a('s_mov_b32 s52, 0x000f000f')
    a('s_mov_b32 exec_lo, s52')
    a('s_mov_b32 exec_hi, s52')
    for r in range(4):
        a('ds_write_b32 v%d, v%d offset:%d' % (la, D[1,0]+r, 80*r+64))
    a('s_mov_b64 exec, -1')
    mx = R.a(); t2 = R.a()
    a('v_mov_b32 v%d, 0' % mx)
    a('s_cmp_eq_u32 s25, 3')
    a('s_cbranch_scc1 k1_now2')
    a('s_waitcnt vmcnt(0)')
    for idx in range(8):
        a('v_lshl_or_b32 v%d, v%d, 16, v%d' % (wr+idx, wi+idx, wr+idx))
    a('buffer_store_dwordx4 %s, v%d, s[28:31], s48 offen' % (vr(wr,4), wdst))
    a('buffer_store_dwordx4 %s, v%d, s[28:31], s48 offen offset:16' % (vr(wr+4,4), wdst))
    for idx in range(8):
        a('v_and_b32 v%d, 0x7fff7fff, v%d' % (t2, wr+idx))
        a('v_pk_max_u16 v%d, v%d, v%d' % (mx, mx, t2))
    a('v_lshrrev_b32 v%d, 16, v%d' % (t2, mx))
    a('v_and_b32 v%d, 0xffff, v%d' % (mx, mx))
    a('v_max_u32 v%d, v%d, v%d' % (mx, mx, t2))
    wave_reduce(a, mx, t2, 'v_max_u32')
    a.label('k1_now2')
    a('s_lshl_b32 s26, s3, 2')
    a('s_add_u32 s26, s26, 10240')
    a('v_mov_b32 v%d, s26' % t2)
    a('ds_write_b32 v%d, v%d' % (t2, mx))
    a('s_waitcnt lgkmcnt(0)')
    a('s_barrier')
    a('s_cmp_ge_u32 s3, 5')
    a('s_cbranch_scc1 k1_nost')
    o = R.a(8,4)
    a('v_lshlrev_b32 v%d, 2, v0' % la)
    for q in range(4):
        a('ds_read2st64_b32 %s, v%d offset0:%d offset1:%d' % (vr(o+2*q,2), la, 10*q, 10*q+5))
    a('v_lshlrev_b32 v%d, 13, v0' % t2)
    a('s_waitcnt lgkmcnt(0)')
    a('buffer_store_dwordx4 %s, v%d, s[16:19], s21 offen' % (vr(o,4), t2))
    a('buffer_store_dwordx4 %s, v%d, s[16:19], s21 offen offset:16' % (vr(o+4,4), t2))
    a('s_endpgm')
    a.label('k1_nost')
    a('s_cmp_lg_u32 s3, 7')
    a('s_cbranch_scc1 %s_end' % name)
    a('v_mov_b32 v%d, 10240' % la)
    a('ds_read_b128 %s, v%d' % (vr(o,4), la))
    a('ds_read_b128 %s, v%d offset:16' % (vr(o+4,4), la))
    a('s_lshl_b32 s26, s2, 2')
    a('v_mov_b32 v%d, 0' % t2)
    a('s_waitcnt lgkmcnt(0)')
    a('v_max3_u32 v%d, v%d, v%d, v%d' % (mx, o, o+1, o+2))
    a('v_max3_u32 v%d, v%d, v%d, v%d' % (mx, mx, o+3, o+4))
    a('v_max3_u32 v%d, v%d, v%d, v%d' % (mx, mx, o+5, o+6))
    a('v_max_u32 v%d, v%d, v%d' % (mx, mx, o+7))
    a('s_mov_b64 exec, 1')
    a('buffer_store_dword v%d, v%d, s[32:35], s26 offen' % (mx, t2))
    kend(a, name)
    return name, R.hi, '; @launch kernel=k1_kernel grid=(256,1,1) block=(512,1,1) lds=10496'

def gen_k3(a):
    name = 'k3_kernel'
    R = Regs(1)
    kstart(a, name, 256)
    ldptr(a, 4, 0); ldptr(a, 16, 72)
    lane, l15, g, xo = row_setup(a, R)
    a('s_waitcnt lgkmcnt(0)')
    mksrd(a, 28, XB, H_OFF, 16)
    mksrd(a, 32, 1024, WMAX_OFF, 16)
    mksrd(a, 36, XB, LN2_OFF, 16)
    mksrd(a, 4, XB); mksrd(a, 16, ZB, Z2_OFF)
    zd = R.a(8,4); t2 = R.a(); la = R.a()
    a('s_cmp_ge_u32 s3, 5')
    a('s_cbranch_scc1 k3_nold')
    a('v_lshlrev_b32 v%d, 13, v0' % t2)
    a('buffer_load_dwordx4 %s, v%d, s[16:19], s21 offen' % (vr(zd,4), t2))
    a('buffer_load_dwordx4 %s, v%d, s[16:19], s21 offen offset:16' % (vr(zd+4,4), t2))
    a.label('k3_nold')
    ef = R.a()
    st = load_wmax_ef(a, R, 32, lane, ef)
    xd = R.a(5)
    for i in range(5):
        a('buffer_load_dword v%d, v%d, s[4:7], s20 offen offset:%d' % (xd+i, xo, 64*i))
    Bre = R.a(4); Bim = R.a(4)
    twc = R.a(8); tws = R.a(8)
    H = {(ob,k): R.a(4) for ob in range(2) for k in 'csn'}
    p = R.a(); k1 = R.a(); n1 = R.a(); c0 = R.a(); s0 = R.a(); c1 = R.a(); s1 = R.a(); g4 = R.a()
    a('v_lshlrev_b32 v%d, 2, v%d' % (g4, g))
    a('v_mul_u32_u24 v%d, v%d, v%d' % (p, g4, l15))
    for i in range(4):
        a('v_and_b32 v%d, 15, v%d' % (k1, p))
        cs(a, k1, 16, c0, s0)
        a('v_mul_f32 v%d, %s, v%d' % (c0, f32(0.25), c0))
        a('v_mul_f32 v%d, %s, v%d' % (s0, f32(0.25), s0))
        a('v_cvt_pk_f16_f32 v%d, v%d, -v%d' % (Bre+i, c0, s0))
        a('v_cvt_pk_f16_f32 v%d, v%d, v%d' % (Bim+i, s0, c0))
        cs(a, p, 320, twc+i, tws+i)
        a('v_lshl_add_u32 v%d, v%d, 4, v%d' % (k1, l15, p))
        cs(a, k1, 320, twc+4+i, tws+4+i)
        if i < 3: a('v_add_u32 v%d, v%d, v%d' % (p, p, l15))
    a('v_cmp_eq_u32 vcc, 0, v%d' % g)
    a('v_cndmask_b32 v%d, 0, 1.0, vcc' % la)
    for ob in range(2):
        a('v_lshrrev_b32 v%d, 2, v%d' % (n1, l15))
        a('v_mul_u32_u24 v%d, 5, v%d' % (n1, n1))
        if ob == 0:
            a('v_and_b32 v%d, 3, v%d' % (k1, l15))
            a('v_add_u32 v%d, v%d, v%d' % (n1, n1, k1))
        else:
            a('v_add_u32 v%d, 4, v%d' % (n1, n1))
        a('v_mul_u32_u24 v%d, v%d, v%d' % (p, g4, n1))
        for jj in range(4):
            if jj == 2: a('v_mad_u32_u24 v%d, 12, v%d, v%d' % (p, n1, p))
            for (cc, ss) in ((c0,s0),(c1,s1)):
                cs(a, p, 20, cc, ss)
                a('v_add_u32 v%d, v%d, v%d' % (p, p, n1))
                if jj >= 2:
                    a('v_mul_f32 v%d, v%d, v%d' % (cc, la, cc))
                    a('v_mul_f32 v%d, v%d, v%d' % (ss, la, ss))
            a('v_cvt_pk_f16_f32 v%d, v%d, v%d' % (H[ob,'c']+jj, c0, c1))
            a('v_cvt_pk_f16_f32 v%d, v%d, v%d' % (H[ob,'s']+jj, s0, s1))
            a('v_cvt_pk_f16_f32 v%d, -v%d, -v%d' % (H[ob,'n']+jj, s0, s1))
    a('s_waitcnt vmcnt(5)')
    finish_wmax_ef(a, R, st, ef)
    a('v_lshlrev_b32 v%d, 23, v%d' % (ef, ef))
    a('v_mul_f32 v%d, %s, v%d' % (ef, f32(0.1), ef))
    a('s_cmp_ge_u32 s3, 5')
    a('s_cbranch_scc1 k3_nowr')
    a('v_lshlrev_b32 v%d, 2, v0' % la)
    for q in range(4):
        a('ds_write2st64_b32 v%d, v%d, v%d offset0:%d offset1:%d' % (la, zd+2*q, zd+2*q+1, 10*q, 10*q+5))
    a.label('k3_nowr')
    a('s_waitcnt lgkmcnt(0)')
    a('s_barrier')
    A = [R.a(4), R.a(4)]
    a('v_add_u32 v%d, s24, v%d' % (la, xo))
    a('v_and_b32 v%d, 3, v%d' % (k1, l15))
    a('v_mul_u32_u24 v%d, 320, v%d' % (t2, g))
    a('v_lshl_add_u32 v%d, v%d, 2, v%d' % (t2, k1, t2))
    a('v_add_u32 v%d, s24, v%d' % (t2, t2))
    a('ds_read2_b32 %s, v%d offset0:0 offset1:20' % (vr(A[0],2), la))
    a('ds_read2_b32 %s, v%d offset0:40 offset1:60' % (vr(A[0]+2,2), la))
    a('ds_read2_b32 %s, v%d offset0:16 offset1:36' % (vr(A[1],2), t2))
    a('ds_read2_b32 %s, v%d offset0:56 offset1:76' % (vr(A[1]+2,2), t2))
    a('s_waitcnt lgkmcnt(0)')
    D = {}
    for rb in range(2):
        for c in range(2):
            D[rb,c] = R.a(4)
            mfma16(a, D[rb,c], A[rb], Bre if c == 0 else Bim, None)
    Tr = R.a(4); Ti = R.a(4); tr_ = R.a(4); ti_ = R.a(4)
    for rb in range(2):
        for r in range(4):
            cmul_tw(a, D[rb,0]+r, D[rb,1]+r, twc+4*rb+r, tws+4*rb+r, tr_+r, ti_+r, +1)
        a('v_cvt_pk_f16_f32 v%d, v%d, v%d' % (Tr+2*rb, tr_, tr_+1))
        a('v_cvt_pk_f16_f32 v%d, v%d, v%d' % (Tr+2*rb+1, tr_+2, tr_+3))
        a('v_cvt_pk_f16_f32 v%d, v%d, v%d' % (Ti+2*rb, ti_, ti_+1))
        a('v_cvt_pk_f16_f32 v%d, v%d, v%d' % (Ti+2*rb+1, ti_+2, ti_+3))
    for ob in range(2):
        mfma16(a, D[ob,0], H[ob,'c'], Tr, None)
        mfma16(a, D[ob,1], H[ob,'s'], Tr, None)
    for ob in range(2):
        mfma16(a, D[ob,0], H[ob,'n'], Ti, D[ob,0])
        mfma16(a, D[ob,1], H[ob,'c'], Ti, D[ob,1])
    xf = R.a(10); hp = R.a(5); lp = R.a(5)
    a('s_waitcnt vmcnt(0)')
    for i in range(5):
        orr = D[0,0]+i if i < 4 else D[1,0]
        oi = D[0,1]+i if i < 4 else D[1,1]
        a('v_mul_f32 v%d, v%d, v%d' % (c0, orr, ef))
        a('v_mul_f32 v%d, v%d, v%d' % (s0, oi, ef))
        a('v_cvt_pk_bf16_f32 v%d, v%d, v%d' % (c1, c0, s0))
        a('v_lshlrev_b32 v%d, 16, v%d' % (c0, c1))
        a('v_and_b32 v%d, 0xffff0000, v%d' % (s0, c1))
        a('v_lshlrev_b32 v%d, 16, v%d' % (c1, xd+i))
        a('v_and_b32 v%d, 0xffff0000, v%d' % (s1, xd+i))
        a('v_add_f32 v%d, v%d, v%d' % (c0, c0, c1))
        a('v_add_f32 v%d, v%d, v%d' % (s0, s0, s1))
        a('v_cvt_pk_bf16_f32 v%d, v%d, v%d' % (hp+i, c0, s0))
        a('v_lshlrev_b32 v%d, 16, v%d' % (xf+2*i, hp+i))
        a('v_and_b32 v%d, 0xffff0000, v%d' % (xf+2*i+1, hp+i))
        a('buffer_store_dword v%d, v%d, s[28:31], s20 offen offset:%d' % (hp+i, xo, 64*i))
    layernorm(a, R, xf, lp)
    for i in range(5):
        a('buffer_store_dword v%d, v%d, s[36:39], s20 offen offset:%d' % (lp+i, xo, 64*i))
    kend(a, name)
    return name, R.hi, '; @launch kernel=k3_kernel grid=(256,1,1) block=(512,1,1) lds=10496'
```

```python
from common import *

def gen_k2(a):
    name = 'k2_kernel'
    R = Regs(1)
    kstart(a, name, 161)
    ldptr(a, 16, 72)
    lane = R.a(); l15 = R.a(); g = R.a(); g4 = R.a(); k1 = R.a(); zo = R.a()
    a('v_lshrrev_b32 v%d, 6, v0' % lane)
    a('v_readfirstlane_b32 s3, v%d' % lane)
    a('v_and_b32 v%d, 63, v0' % lane)
    a('v_and_b32 v%d, 15, v0' % l15)
    a('v_bfe_u32 v%d, v0, 4, 2' % g)
    a('v_lshlrev_b32 v%d, 2, v%d' % (g4, g))
    a('s_lshl_b32 s4, s3, 4')
    a('v_add_u32 v%d, s4, v%d' % (k1, l15))
    a('v_lshlrev_b32 v%d, 8, v%d' % (zo, l15))
    a('v_lshl_add_u32 v%d, v%d, 4, v%d' % (zo, g, zo))
    a('s_sub_u32 s5, 320, s2')
    a('s_cmp_eq_u32 s2, 0')
    a('s_cselect_b32 s5, 0, s5')
    a('s_lshl_b32 s6, s2, 13')
    a('s_lshl_b32 s7, s5, 13')
    a('s_add_u32 s8, s6, 4096')
    a('s_add_u32 s9, s7, 4096')
    a('s_add_u32 s10, s6, %d' % (162*8192))
    a('s_waitcnt lgkmcnt(0)')
    mksrd(a, 20, ZB, Z2_OFF, 16)
    mksrd(a, 28, TCOLS*8192, TA_OFF, 16)
    mksrd(a, 32, 1024, WMAX_OFF, 16)
    mksrd(a, 16, ZB)
    Z = {}
    for col in range(2):
        for rb in range(2):
            for t in range(4):
                Z[col,rb,t] = R.a(4)
                a('buffer_load_dwordx4 %s, v%d, s[16:19], s%d offen offset:%d' % (vr(Z[col,rb,t],4), zo, 6+col+2*rb, 64*t))
    ef = R.a()
    st = load_wmax_ef(a, R, 32, lane, ef)
    TA = R.a(8,4); TB = R.a(8,4); TA2 = R.a(8,4); TB2 = R.a(8,4); to = R.a()
    a('v_lshlrev_b32 v%d, 5, v0' % to)
    for (T, so) in ((TA,'s6'),(TB,'s10')):
        a('buffer_load_dwordx4 %s, v%d, s[28:31], %s offen' % (vr(T,4), to, so))
        a('buffer_load_dwordx4 %s, v%d, s[28:31], %s offen offset:16' % (vr(T+4,4), to, so))
    a('s_mov_b32 s11, %d' % (161*8192))
    a('s_mov_b32 s12, %d' % (323*8192))
    for (T, so) in ((TA2,'s11'),(TB2,'s12')):
        a('buffer_load_dwordx4 %s, v%d, s[28:31], %s offen' % (vr(T,4), to, so))
        a('buffer_load_dwordx4 %s, v%d, s[28:31], %s offen offset:16' % (vr(T+4,4), to, so))
    Bre = [R.a(4) for t in range(4)]; Bim = [R.a(4) for t in range(4)]
    F = {(ob,k): R.a(4) for ob in range(2) for k in 'csn'}
    twc = R.a(8); tws = R.a(8); iwc = Z[0,0,2]; iws = Z[1,0,2]
    p = R.a(); q = R.a(); c0 = R.a(); s0 = R.a(); c1 = R.a(); s1 = R.a(); m = R.a()
    a('v_mul_u32_u24 v%d, v%d, v%d' % (p, g4, k1))
    for t in range(4):
        for i in range(4):
            a('v_and_b32 v%d, 63, v%d' % (q, p))
            cs(a, q, 64, c0, s0)
            if t < 2:
                cs(a, p, 2048, twc+4*t+i, tws+4*t+i)
            a('v_add_u32 v%d, v%d, v%d' % (p, p, k1))
            a('v_mul_f32 v%d, %s, v%d' % (c0, f32(0.125), c0))
            a('v_mul_f32 v%d, %s, v%d' % (s0, f32(0.125), s0))
            a('v_cvt_pk_f16_f32 v%d, v%d, v%d' % (Bre[t]+i, c0, s0))
            a('v_cvt_pk_f16_f32 v%d, -v%d, v%d' % (Bim[t]+i, s0, c0))
        if t < 3: a('v_mad_u32_u24 v%d, 12, v%d, v%d' % (p, k1, p))
    for ob in range(2):
        a('v_add_u32 v%d, %d, v%d' % (m, 16*ob, l15))
        a('v_mul_u32_u24 v%d, v%d, v%d' % (p, g4, m))
        for jj in range(4):
            if jj == 2: a('v_mad_u32_u24 v%d, 12, v%d, v%d' % (p, m, p))
            for (cc, ss) in ((c0,s0),(c1,s1)):
                a('v_and_b32 v%d, 31, v%d' % (q, p))
                cs(a, q, 32, cc, ss)
                a('v_add_u32 v%d, v%d, v%d' % (p, p, m))
                a('v_mul_f32 v%d, %s, v%d' % (cc, f32(0.25), cc))
                a('v_mul_f32 v%d, %s, v%d' % (ss, f32(0.25), ss))
            a('v_cvt_pk_f16_f32 v%d, v%d, v%d' % (F[ob,'c']+jj, c0, c1))
            a('v_cvt_pk_f16_f32 v%d, v%d, v%d' % (F[ob,'s']+jj, s0, s1))
            a('v_cvt_pk_f16_f32 v%d, -v%d, -v%d' % (F[ob,'n']+jj, s0, s1))
    tr = R.a(); ti = R.a(); trs = R.a(); tis = R.a(); sc = R.a()
    a('v_mov_b32 v%d, s2' % p)
    cs(a, p, 640, ti, tr)
    a('v_xor_b32 v%d, 0x80000000, v%d' % (tr, tr))
    a('v_xor_b32 v%d, 0x80000000, v%d' % (ti, ti))
    a('s_waitcnt vmcnt(17)')
    D = {}
    def step1(col):
        for rb in range(2):
            for c in range(2):
                D[col,rb,c] = R.a(4)
        for t in range(4):
            for rb in range(2):
                for c in range(2):
                    mfma16(a, D[col,rb,c], Z[col,rb,t], (Bre if c == 0 else Bim)[t], None if t == 0 else D[col,rb,c])
    step1(0)
    a('s_waitcnt vmcnt(9)')
    for rb in range(2):
        for t in range(4):
            for i in range(4):
                a('v_xor_b32 v%d, 0x80000000, v%d' % (Z[1,rb,t]+i, Z[1,rb,t]+i))
    step1(1)
    a('s_waitcnt vmcnt(8)')
    finish_wmax_ef(a, R, st, ef)
    a('v_sub_u32 v%d, 252, v%d' % (sc, ef))
    a('v_lshlrev_b32 v%d, 23, v%d' % (sc, sc))
    a('v_mul_f32 v%d, v%d, v%d' % (trs, tr, sc))
    a('v_mul_f32 v%d, v%d, v%d' % (tis, ti, sc))
    tr_ = R.a(4); ti_ = R.a(4)
    P = {}
    O = {}
    for col in range(2):
        Pr = Z[col,0,0]; Pi = Z[col,0,1]
        for rb in range(2):
            for r in range(4):
                cmul_tw(a, D[col,rb,0]+r, D[col,rb,1]+r, twc+4*rb+r, tws+4*rb+r, tr_+r, ti_+r, -1)
            a('v_cvt_pk_f16_f32 v%d, v%d, v%d' % (Pr+2*rb, tr_, tr_+1))
            a('v_cvt_pk_f16_f32 v%d, v%d, v%d' % (Pr+2*rb+1, tr_+2, tr_+3))
            a('v_cvt_pk_f16_f32 v%d, v%d, v%d' % (Pi+2*rb, ti_, ti_+1))
            a('v_cvt_pk_f16_f32 v%d, v%d, v%d' % (Pi+2*rb+1, ti_+2, ti_+3))
        for ob in range(2):
            mfma16(a, D[col,ob,0], F[ob,'c'], Pr, None)
            mfma16(a, D[col,ob,1], F[ob,'c'], Pi, None)
        for ob in range(2):
            mfma16(a, D[col,ob,0], F[ob,'s'], Pi, D[col,ob,0])
            mfma16(a, D[col,ob,1], F[ob,'n'], Pr, D[col,ob,1])
    for ob in range(2):
        a('v_add_u32 v%d, %d, v%d' % (m, 16*ob, l15))
        a('v_add_u32 v%d, s4, v%d' % (q, g4))
        a('v_mul_u32_u24 v%d, v%d, v%d' % (p, q, m))
        for r in range(4):
            cs(a, p, 2048, iwc+4*ob+r, iws+4*ob+r)
            if r < 3: a('v_add_u32 v%d, v%d, v%d' % (p, p, m))
    Hc = [Z[0,1,0], Z[0,1,1]]; Hs = [Z[0,1,2], Z[0,1,3]]; Hn = [Z[1,1,0], Z[1,1,1]]
    a('s_mov_b32 s13, 0x05040100')
    a('s_mov_b32 s14, 0x07060302')
    for t in range(2):
        for jj in range(4):
            tp = 2*t + (jj >> 1); i = 2*(jj & 1)
            a('v_perm_b32 v%d, v%d, v%d, s13' % (Hc[t]+jj, Bre[tp]+i+1, Bre[tp]+i))
            a('v_perm_b32 v%d, v%d, v%d, s14' % (Hs[t]+jj, Bre[tp]+i+1, Bre[tp]+i))
            a('v_perm_b32 v%d, v%d, v%d, s13' % (Hn[t]+jj, Bim[tp]+i+1, Bim[tp]+i))
    a('s_waitcnt vmcnt(0)')
    Sr,Si,Dr,Di,Or,Oi,X1r,X1i = [twc+i for i in range(8)]
    X2r,X2i,V1r,V1i,V2r,V2i = [tws+i for i in range(6)]
    a1r,a1i,a2r,a2i = [Z[1,1,2]+i for i in range(4)]
    a('s_cmp_eq_u32 s2, 0')
    a('s_cbranch_scc1 k2_z0')
    for ver in range(2):
      if ver == 1:
        a('s_branch k2_nz')
        a.label('k2_z0')
      for e in range(8):
        ob = e >> 2; r = e & 3
        a('v_lshlrev_b32 v%d, 16, v%d' % (a1r, TA+e))
        a('v_and_b32 v%d, 0xffff0000, v%d' % (a1i, TA+e))
        a('v_lshlrev_b32 v%d, 16, v%d' % (a2r, TB+e))
        a('v_and_b32 v%d, 0xffff0000, v%d' % (a2i, TB+e))
        if ver == 1:
          for (wr_, wi_, T2) in ((a1r,a1i,TA2),(a2r,a2i,TB2)):
            a('v_lshlrev_b32 v%d, 16, v%d' % (c0, T2+e))
            a('v_and_b32 v%d, 0xffff0000, v%d' % (s0, T2+e))
            a('v_add_f32 v%d, v%d, v%d' % (wr_, wr_, c0))
            a('v_sub_f32 v%d, v%d, v%d' % (wi_, wi_, s0))
            a('v_mul_f32 v%d, 0.5, v%d' % (wr_, wr_))
            a('v_mul_f32 v%d, 0.5, v%d' % (wi_, wi_))
        ar = D[0,ob,0]+r; ai = D[0,ob,1]+r; br = D[1,ob,0]+r; bi = D[1,ob,1]+r
        a('''v_add_f32 v{Sr}, v{ar}, v{br}
v_add_f32 v{Si}, v{ai}, v{bi}
v_sub_f32 v{Dr}, v{ar}, v{br}
v_sub_f32 v{Di}, v{ai}, v{bi}
v_mul_f32 v{Or}, v{trs}, v{Dr}
v_mul_f32 v{Oi}, v{trs}, v{Di}
v_fma_f32 v{Or}, -v{tis}, v{Di}, v{Or}
v_fmac_f32 v{Oi}, v{tis}, v{Dr}
v_fma_f32 v{X1r}, v{sc}, v{Sr}, v{Or}
v_fma_f32 v{X1i}, v{sc}, v{Si}, v{Oi}
v_fma_f32 v{X2r}, v{sc}, v{Sr}, -v{Or}
v_fma_f32 v{X2i}, v{sc}, v{Si}, -v{Oi}
v_mul_f32 v{V1r}, v{X1r}, v{a1r}
v_mul_f32 v{V1i}, v{X1r}, v{a1i}
v_mul_f32 v{V2r}, v{X2r}, v{a2r}
v_mul_f32 v{V2i}, v{X2i}, v{a2r}
v_fma_f32 v{V1r}, -v{X1i}, v{a1i}, v{V1r}
v_fmac_f32 v{V1i}, v{X1i}, v{a1r}
v_fmac_f32 v{V2r}, v{X2i}, v{a2i}
v_fma_f32 v{V2i}, -v{X2r}, v{a2i}, v{V2i}
v_add_f32 v{Sr}, v{V1r}, v{V2r}
v_add_f32 v{Si}, v{V1i}, v{V2i}
v_sub_f32 v{Dr}, v{V1r}, v{V2r}
v_sub_f32 v{Di}, v{V1i}, v{V2i}
v_mul_f32 v{Or}, v{tr}, v{Dr}
v_mul_f32 v{Oi}, v{tr}, v{Di}
v_fmac_f32 v{Or}, v{ti}, v{Di}
v_fma_f32 v{Oi}, -v{ti}, v{Dr}, v{Oi}
v_add_f32 v{ar}, v{Sr}, v{Or}
v_add_f32 v{ai}, v{Si}, v{Oi}
v_sub_f32 v{br}, v{Sr}, v{Or}
v_sub_f32 v{bi}, v{Si}, v{Oi}'''.format(**locals()))
    a.label('k2_nz')
    la = R.a()
    a('v_lshlrev_b32 v%d, 4, v%d' % (la, lane))
    a('s_lshr_b32 s15, s3, 1')
    a('s_lshl_b32 s15, s15, 10')
    a('s_and_b32 s24, s3, 1')
    a('s_lshl_b32 s24, s24, 3')
    a('s_add_u32 s15, s15, s24')
    lw = R.a()
    a('v_add_u32 v%d, s15, v%d' % (lw, la))
    T = {}
    for col in range(2):
        Pr = Z[col,0,0]; Pi = Z[col,0,1]
        for ob in range(2):
            for h in range(2):
                a('v_cvt_pk_f16_f32 v%d, v%d, v%d' % (Pr+2*ob+h, D[col,ob,0]+2*h, D[col,ob,0]+2*h+1))
                a('v_cvt_pk_f16_f32 v%d, v%d, v%d' % (Pi+2*ob+h, D[col,ob,1]+2*h, D[col,ob,1]+2*h+1))
        for cb in range(2):
            mfma16(a, D[col,cb,0], Pr, F[cb,'c'], None)
            mfma16(a, D[col,cb,1], Pr, F[cb,'s'], None)
        for cb in range(2):
            mfma16(a, D[col,cb,0], Pi, F[cb,'n'], D[col,cb,0])
            mfma16(a, D[col,cb,1], Pi, F[cb,'c'], D[col,cb,1])
    for col in range(2):
        for cb in range(2):
            for r in range(4):
                cmul_tw(a, D[col,cb,0]+r, D[col,cb,1]+r, iwc+4*cb+r, iws+4*cb+r, tr_+r, ti_+r, +1)
            a('v_cvt_pk_f16_f32 v%d, v%d, v%d' % (D[col,cb,0], tr_, tr_+1))
            a('v_cvt_pk_f16_f32 v%d, v%d, v%d' % (D[col,cb,0]+1, tr_+2, tr_+3))
            a('v_cvt_pk_f16_f32 v%d, v%d, v%d' % (D[col,cb,0]+2, ti_, ti_+1))
            a('v_cvt_pk_f16_f32 v%d, v%d, v%d' % (D[col,cb,0]+3, ti_+2, ti_+3))
            for c in range(2):
                a('ds_write_b64 v%d, %s offset:%d' % (lw, vr(D[col,cb,0]+2*c,2), ((col*2+cb)*2+c)*2048))
    a('s_waitcnt lgkmcnt(0)')
    a('s_barrier')
    TT = {}
    pool = Bre + Bim + [TA, TA+4, TB, TB+4, TA2, TA2+4, TB2, TB2+4]
    for col in range(2):
        for cb in range(2):
            for c in range(2):
                for t in range(2):
                    TT[col,cb,c,t] = pool.pop()
                    a('ds_read_b128 %s, v%d offset:%d' % (vr(TT[col,cb,c,t],4), la, ((col*2+cb)*2+c)*2048 + t*1024))
    a('v_lshlrev_b32 v%d, 8, v%d' % (zo, l15))
    a('v_lshl_add_u32 v%d, v%d, 4, v%d' % (zo, g, zo))
    a('s_lshl_b32 s24, s3, 6')
    a('v_add_u32 v%d, s24, v%d' % (zo, zo))
    for col in range(2):
        a('s_waitcnt lgkmcnt(%d)' % (8 if col == 0 else 0))
        for t in range(2):
            for cb in range(2):
                mfma16(a, D[col,cb,0], Hc[t], TT[col,cb,0,t], None if t == 0 else D[col,cb,0])
                mfma16(a, D[col,cb,1], Hs[t], TT[col,cb,0,t], None if t == 0 else D[col,cb,1])
            for cb in range(2):
                mfma16(a, D[col,cb,0], Hn[t], TT[col,cb,1,t], D[col,cb,0])
                mfma16(a, D[col,cb,1], Hc[t], TT[col,cb,1,t], D[col,cb,1])
    for col in range(2):
        if col == 1:
            a('s_cmp_eq_u32 s2, s5')
            a('s_cbranch_scc1 %s_end' % name)
        for cb in range(2):
            for r in range(4):
                a('v_cvt_pk_f16_f32 v%d, v%d, %sv%d' % (D[col,cb,0]+r, D[col,cb,0]+r, '-' if col else '', D[col,cb,1]+r))
            a('buffer_store_dwordx4 %s, v%d, s[20:23], s%d offen' % (vr(D[col,cb,0],4), zo, 6+col+2*cb))
    kend(a, name)
    return name, R.hi, '; @launch kernel=k2_kernel grid=(161,1,1) block=(256,1,1) lds=16384'
```

```python
from common import *

def gen_k4(a):
    name = 'k4_kernel'
    R = Regs(1)
    kstart(a, name, 216)
    ldptr(a, 8, 32); ldptr(a, 12, 40); ldptr(a, 16, 72)
    l = R.a(); t = R.a(); t2 = R.a(); t3 = R.a()
    a('v_lshrrev_b32 v%d, 6, v0' % l)
    a('v_readfirstlane_b32 s3, v%d' % l)
    a('v_and_b32 v%d, 63, v0' % l)
    a('s_and_b32 s4, s2, 7')
    a('s_lshr_b32 s5, s2, 3')
    a('s_lshr_b32 s6, s3, 1')
    a('s_and_b32 s7, s3, 1')
    vdx = R.a(4); vdw = R.a()
    a('s_lshl_b32 s24, s4, 8')
    a('s_lshl_b32 s25, s3, 5')
    a('s_add_u32 s24, s24, s25')
    a('v_lshrrev_b32 v%d, 3, v%d' % (t, l))
    a('v_add_u32 v%d, s24, v%d' % (t2, t))
    a('v_mul_u32_u24 v%d, 1280, v%d' % (t2, t2))
    a('v_lshrrev_b32 v%d, 4, v%d' % (t3, l))
    a('v_xor_b32 v%d, v%d, v%d' % (t3, t3, l))
    a('v_and_b32 v%d, 7, v%d' % (t3, t3))
    for i in range(4):
        if i & 1: a('v_xor_b32 v%d, 4, v%d' % (vdx+i, t3))
        else: a('v_mov_b32 v%d, v%d' % (vdx+i, t3))
        a('v_lshl_add_u32 v%d, v%d, 4, v%d' % (vdx+i, vdx+i, t2))
        if i: a('v_add_u32 v%d, %d, v%d' % (vdx+i, 8*i*1280, vdx+i))
    a('s_lshl_b32 s25, s3, 3')
    a('v_add_u32 v%d, s25, v%d' % (t2, t))
    a('v_mul_u32_u24 v%d, 3456, v%d' % (t2, t2))
    a('v_lshrrev_b32 v%d, 2, v%d' % (t3, l))
    a('v_and_b32 v%d, 4, v%d' % (t3, t3))
    a('v_xor_b32 v%d, v%d, v%d' % (t3, t3, l))
    a('v_and_b32 v%d, 7, v%d' % (t3, t3))
    a('v_lshl_add_u32 v%d, v%d, 4, v%d' % (vdw, t3, t2))
    a('s_lshl_b32 s25, s5, 7')
    a('v_add_u32 v%d, s25, v%d' % (vdw, vdw))
    a('s_lshl_b32 s26, s3, 12')
    a('s_lshl_b32 s27, s3, 10')
    a('s_waitcnt lgkmcnt(0)')
    mksrd(a, 20, GUB, GU_OFF, 16)
    mksrd(a, 16, XB, LN2_OFF)
    mksrd(a, 8, WGB); mksrd(a, 12, WGB)
    def dma(kt):
        sb = (kt % 3) * 49152
        a('s_mov_b32 s28, %d' % (kt*128))
        a('s_mov_b32 s29, %d' % (kt*221184))
        for i in range(4):
            a('s_add_u32 m0, s26, %d' % (sb + i*1024))
            a('buffer_load_dwordx4 v%d, s[16:19], s28 offen lds' % (vdx+i))
        a('s_add_u32 m0, s27, %d' % (sb + 32768))
        a('buffer_load_dwordx4 v%d, s[8:11], s29 offen lds' % vdw)
        a('s_add_u32 m0, s27, %d' % (sb + 40960))
        a('buffer_load_dwordx4 v%d, s[12:15], s29 offen lds' % vdw)
    dma(0); dma(1)
    vX = [R.a(4), R.a(4)]; vW = R.a(3)
    a('v_and_b32 v%d, 31, v%d' % (t, l))
    a('s_lshl_b32 s25, s6, 6')
    a('v_add_u32 v%d, s25, v%d' % (t, t))
    rowl = R.a()
    a('v_mov_b32 v%d, v%d' % (rowl, t))
    a('v_lshlrev_b32 v%d, 7, v%d' % (t, t))
    a('v_lshrrev_b32 v%d, 5, v%d' % (t2, l))
    a('v_bfe_u32 v%d, v%d, 1, 3' % (t3, l))
    a('v_xor_b32 v%d, v%d, v%d' % (t3, t3, t2))
    for ks in range(4):
        a('v_xor_b32 v%d, %d, v%d' % (vX[0]+ks, 2*ks, t3))
        a('v_lshl_add_u32 v%d, v%d, 4, v%d' % (vX[0]+ks, vX[0]+ks, t))
        a('v_add_u32 v%d, %d, v%d' % (vX[1]+ks, 98304, vX[0]+ks))
    a('v_bfe_u32 v%d, v%d, 2, 2' % (t, l))
    a('v_lshl_add_u32 v%d, v%d, 3, v%d' % (t3, t2, t))
    a('v_lshlrev_b32 v%d, 7, v%d' % (t3, t3))
    a('v_lshrrev_b32 v%d, 1, v%d' % (t, t))
    a('v_lshlrev_b32 v%d, 6, v%d' % (t, t))
    a('v_and_b32 v%d, 3, v%d' % (vW, l))
    a('v_lshlrev_b32 v%d, 3, v%d' % (vW, vW))
    a('v_and_b32 v%d, 16, v%d' % (vW+1, l))
    a('v_lshl_add_u32 v%d, v%d, 1, v%d' % (vW, vW+1, vW))
    a('s_lshl_b32 s25, s7, 6')
    a('v_add_u32 v%d, s25, v%d' % (vW, vW))
    a('v_xor_b32 v%d, v%d, v%d' % (vW, vW, t))
    a('v_add_u32 v%d, v%d, v%d' % (vW, vW, t3))
    a('v_add_u32 v%d, 32768, v%d' % (vW, vW))
    a('v_add_u32 v%d, 49152, v%d' % (vW+1, vW))
    a('v_add_u32 v%d, 98304, v%d' % (vW+2, vW))
    acc = {(rb,gu): R.a(16) for rb in range(2) for gu in range(2)}
    FX = {(ks,rb): R.a(4) for ks in range(4) for rb in range(2)}
    FW = {(ks,gu): R.a(4) for ks in range(4) for gu in range(2)}
    def reads(kt, ks):
        st = kt % 3
        for gu in range(2):
            for q in range(2):
                a('ds_read_b64_tr_b16 %s, v%d offset:%d' % (vr(FW[ks,gu]+2*q,2), vW+st, ks*2048+q*512+gu*8192))
        for rb in range(2):
            a('ds_read_b128 %s, v%d offset:%d' % (vr(FX[ks,rb],4), vX[st>>1]+ks, rb*4096 + (st&1)*49152))
    def mm(kt, ks):
        for rb in range(2):
            for gu in range(2):
                c = '0' if (kt == 0 and ks == 0) else vr(acc[rb,gu],16)
                a('v_mfma_f32_32x32x16_bf16 %s, %s, %s, %s' % (vr(acc[rb,gu],16), vr(FW[ks,gu],4), vr(FX[ks,rb],4), c))
    for kt in range(10):
        a('s_waitcnt vmcnt(%d)' % (6 if kt < 9 else 0))
        a('s_barrier')
        reads(kt, 0); reads(kt, 1)
        if kt + 2 <= 9: dma(kt+2)
        a('s_waitcnt lgkmcnt(6)')
        reads(kt, 2)
        mm(kt, 0)
        a('s_waitcnt lgkmcnt(6)')
        reads(kt, 3)
        mm(kt, 1)
        a('s_waitcnt lgkmcnt(6)')
        mm(kt, 2)
        a('s_waitcnt lgkmcnt(0)')
        mm(kt, 3)
    vo = R.a()
    a('v_mul_u32_u24 v%d, 3456, v%d' % (vo, rowl))
    a('v_lshrrev_b32 v%d, 5, v%d' % (t2, l))
    a('v_lshl_add_u32 v%d, v%d, 4, v%d' % (vo, t2, vo))
    a('s_mul_i32 s24, s4, %d' % (256*3456))
    a('s_lshl_b32 s25, s5, 7')
    a('s_add_u32 s24, s24, s25')
    a('s_lshl_b32 s25, s7, 6')
    a('s_add_u32 s24, s24, s25')
    a('s_add_u32 s25, s24, %d' % (32*3456))
    c1 = -2*0.7978845608028654*math.log2(math.e)
    a('s_mov_b32 s30, %s' % f32(c1))
    a('s_mov_b32 s31, %s' % f32(c1*0.044715))
    T = [FX[0,0], FX[0,1], FX[1,0], FX[1,1]]
    O = [FW[0,0], FW[0,1], FW[1,0], FW[1,1]]
    oi = 0
    for rb in range(2):
        for qq in range(2):
            o = O[oi]; oi += 1
            for pr in range(4):
                r0 = 8*qq + 2*pr
                g0 = acc[rb,0]+r0; u0 = acc[rb,1]+r0
                x0, x1, e0, e1 = T[pr], T[pr]+1, T[pr]+2, T[pr]+3
                a('v_cvt_pk_bf16_f32 v%d, v%d, v%d' % (x1, g0, g0+1))
                a('v_cvt_pk_bf16_f32 v%d, v%d, v%d' % (u0, u0, u0+1))
                a('v_lshlrev_b32 v%d, 16, v%d' % (x0, x1))
                a('v_and_b32 v%d, 0xffff0000, v%d' % (x1, x1))
                a('v_mul_f32 v%d, v%d, v%d' % (e0, x0, x0))
                a('v_mul_f32 v%d, v%d, v%d' % (e1, x1, x1))
                a('v_mov_b32 v%d, s30' % g0)
                a('v_fma_f32 v%d, v%d, s31, v%d' % (e0, e0, g0))
                a('v_fma_f32 v%d, v%d, s31, v%d' % (e1, e1, g0))
                a('v_mul_f32 v%d, v%d, v%d' % (e0, e0, x0))
                a('v_mul_f32 v%d, v%d, v%d' % (e1, e1, x1))
                a('v_exp_f32 v%d, v%d' % (e0, e0))
                a('v_exp_f32 v%d, v%d' % (e1, e1))
                a('v_and_b32 v%d, 0xffff0000, v%d' % (u0+1, u0))
                a('v_lshlrev_b32 v%d, 16, v%d' % (u0, u0))
                a('v_add_f32 v%d, 1.0, v%d' % (e0, e0))
                a('v_add_f32 v%d, 1.0, v%d' % (e1, e1))
                a('v_rcp_f32 v%d, v%d' % (e0, e0))
                a('v_rcp_f32 v%d, v%d' % (e1, e1))
                a('v_mul_f32 v%d, v%d, v%d' % (x0, x0, e0))
                a('v_mul_f32 v%d, v%d, v%d' % (x1, x1, e1))
                a('v_cvt_pk_bf16_f32 v%d, v%d, v%d' % (x1, x0, x1))
                a('v_lshlrev_b32 v%d, 16, v%d' % (x0, x1))
                a('v_and_b32 v%d, 0xffff0000, v%d' % (x1, x1))
                a('v_mul_f32 v%d, v%d, v%d' % (x0, x0, u0))
                a('v_mul_f32 v%d, v%d, v%d' % (x1, x1, u0+1))
                a('v_cvt_pk_bf16_f32 v%d, v%d, v%d' % (o+pr, x0, x1))
            a('v_permlane32_swap_b32 v%d, v%d' % (o, o+2))
            a('v_permlane32_swap_b32 v%d, v%d' % (o+1, o+3))
            a('buffer_store_dwordx4 %s, v%d, s[20:23], s%d offen offset:%d' % (vr(o,4), vo, 24+rb, 32*qq))
    kend(a, name)
    return name, R.hi, '; @launch kernel=k4_kernel grid=(216,1,1) block=(512,1,1) lds=147456'

def gen_k5(a):
    name = 'k5_kernel'
    R = Regs(1)
    kstart(a, name, 256)
    ldptr(a, 8, 48); ldptr(a, 12, 56); ldptr(a, 16, 72)
    l = R.a(); l15 = R.a(); g = R.a(); t = R.a(); t2 = R.a(); t3 = R.a()
    a('v_lshrrev_b32 v%d, 6, v0' % l)
    a('v_readfirstlane_b32 s3, v%d' % l)
    a('v_and_b32 v%d, 63, v0' % l)
    a('v_and_b32 v%d, 15, v0' % l15)
    a('v_bfe_u32 v%d, v0, 4, 2' % g)
    a('s_and_b32 s4, s2, 7')
    a('s_lshl_b32 s4, s4, 2')
    a('s_bfe_u32 s5, s2, 0x20003')
    a('s_add_u32 s4, s4, s5')
    a('s_lshr_b32 s5, s2, 5')
    a('s_mul_i32 s6, s5, 160')
    vd = R.a(5)
    for i in range(5):
        a('v_add_u32 v%d, %d, v%d' % (t, 64*i, l))
        a('v_mul_u32_u24 v%d, 52429, v%d' % (t2, t))
        a('v_lshrrev_b32 v%d, 19, v%d' % (t2, t2))
        a('v_mul_u32_u24 v%d, 10, v%d' % (t3, t2))
        a('v_sub_u32 v%d, v%d, v%d' % (t, t, t3))
        a('v_lshrrev_b32 v%d, 1, v%d' % (t3, t2))
        a('v_and_b32 v%d, 4, v%d' % (t3, t3))
        a('v_xor_b32 v%d, v%d, v%d' % (t2, t2, t3))
        a('v_mul_u32_u24 v%d, 1280, v%d' % (t2, t2))
        a('v_lshl_add_u32 v%d, v%d, 4, v%d' % (vd+i, t, t2))
        a('v_add_u32 v%d, s6, v%d' % (vd+i, vd+i))
    vg = R.a(4); vgl = R.a(4)
    for i in range(4):
        a('s_add_u32 s24, s3, %d' % i)
        a('s_and_b32 s24, s24, 3')
        a('s_lshl_b32 s24, s24, 4')
        a('v_add_u32 v%d, s24, v%d' % (t, l15))
        a('v_mul_u32_u24 v%d, 3456, v%d' % (t, t))
        a('v_lshl_add_u32 v%d, v%d, 4, v%d' % (vg+i, g, t))
    a('v_cmp_gt_u32 vcc, 2, v%d' % g)
    a('v_mov_b32 v%d, 0x7f000000' % t)
    for i in range(4):
        a('v_cndmask_b32 v%d, v%d, v%d, vcc' % (vgl+i, t, vg+i))
    a('s_mul_i32 s24, s4, %d' % (64*3456))
    a('s_mul_i32 s25, s3, 864')
    a('s_add_u32 s24, s24, s25')
    a('s_mul_i32 s25, s3, %d' % (432*1280))
    a('s_mul_i32 s26, s3, 20480')
    vh = R.a(); hh = R.a(10)
    a('s_lshl_b32 s27, s4, 6')
    a('s_lshl_b32 s28, s3, 4')
    a('s_add_u32 s27, s27, s28')
    a('v_add_u32 v%d, s27, v%d' % (t, l15))
    a('v_mul_u32_u24 v%d, 1280, v%d' % (t, t))
    a('v_lshl_add_u32 v%d, v%d, 3, v%d' % (vh, g, t))
    a('s_waitcnt lgkmcnt(0)')
    mksrd(a, 20, XB, H_OFF, 16)
    mksrd(a, 16, GUB, GU_OFF)
    mksrd(a, 8, WDB); mksrd(a, 12, XB)
    G = [[R.a(4) for i in range(4)] for b in range(4)]
    def loads(s):
        for i in range(5):
            a('s_add_u32 m0, s26, %d' % ((s % 4)*5120 + i*1024))
            a('buffer_load_dwordx4 v%d, s[8:11], s25 offen lds' % (vd+i))
        a('s_add_u32 s25, s25, 40960')
        for i in range(4):
            a('buffer_load_dwordx4 %s, v%d, s[16:19], s24 offen offset:%d' % (vr(G[s%4][i],4), (vgl if s == 13 else vg)+i, 64*s))
    loads(0); loads(1); loads(2)
    for jt in range(5):
        a('buffer_load_dwordx2 %s, v%d, s[20:23], s6 offen offset:%d' % (vr(hh+2*jt,2), vh, 32*jt))
    vq = R.a(2)
    a('v_bfe_u32 v%d, v%d, 2, 2' % (t, l))
    a('v_lshl_add_u32 v%d, v%d, 3, v%d' % (t, g, t))
    a('v_and_b32 v%d, 1, v%d' % (t2, g))
    a('v_lshl_add_u32 v%d, v%d, 2, v%d' % (t3, t2, t))
    a('v_xor_b32 v%d, 1, v%d' % (t2, t2))
    a('v_lshl_add_u32 v%d, v%d, 2, v%d' % (t, t2, t))
    a('v_and_b32 v%d, 3, v%d' % (t2, l))
    a('v_lshlrev_b32 v%d, 3, v%d' % (t2, t2))
    a('v_add_u32 v%d, s26, v%d' % (t2, t2))
    a('v_mad_u32_u24 v%d, v%d, 160, v%d' % (vq, t3, t2)) if False else None
    a('v_mul_u32_u24 v%d, 160, v%d' % (t3, t3))
    a('v_mul_u32_u24 v%d, 160, v%d' % (t, t))
    a('v_add_u32 v%d, v%d, v%d' % (vq, t3, t2))
    a('v_add_u32 v%d, v%d, v%d' % (vq+1, t, t2))
    FW = [[R.a(4) for jt in range(5)] for b in range(2)]
    acc = {(jt,i): R.a(4) for jt in range(5) for i in range(4)}
    def treads(s):
        for jt in range(5):
            for q in range(2):
                a('ds_read_b64_tr_b16 %s, v%d offset:%d' % (vr(FW[s%2][jt]+2*q,2), vq+q, (s%4)*5120 + jt*32))
    a('s_waitcnt vmcnt(23)')
    treads(0)
    for s in range(14):
        a('s_waitcnt lgkmcnt(0)')
        if s + 3 <= 13: loads(s+3)
        if s + 1 <= 13:
            n = min(13, s+3) - (s+1)
            extra = 5 if s <= 1 else 0
            a('s_waitcnt vmcnt(%d)' % (9*n + extra))
            treads(s+1)
        for i in range(4):
            for jt in range(5):
                mfma16(a, acc[jt,i], FW[s%2][jt], G[s%4][i], None if s == 0 else acc[jt,i], 'bf16')
    la = R.a(); lr = R.a(3)
    a('v_lshlrev_b32 v%d, 4, v%d' % (t, l))
    a('v_add_u32 v%d, s26, v%d' % (la, t))
    for d in range(1,4):
        a('s_sub_u32 s28, s3, %d' % d)
        a('s_and_b32 s28, s28, 3')
        a('s_mul_i32 s28, s28, 20480')
        a('v_add_u32 v%d, s28, v%d' % (lr+d-1, t))
    for i in range(1,4):
        for jt in range(5):
            a('ds_write_b128 v%d, %s offset:%d' % (la, vr(acc[jt,i],4), ((i-1)*5+jt)*1024))
    a('s_waitcnt lgkmcnt(0)')
    a('s_barrier')
    for d in range(1,4):
        for jt in range(5):
            a('ds_read_b128 %s, v%d offset:%d' % (vr(acc[jt,d],4), lr+d-1, ((d-1)*5+jt)*1024))
    for d in range(1,4):
        a('s_waitcnt lgkmcnt(%d)' % (5*(3-d)))
        for jt in range(5):
            for r in range(4):
                a('v_add_f32 v%d, v%d, v%d' % (acc[jt,0]+r, acc[jt,0]+r, acc[jt,d]+r))
    for jt in range(5):
        A = acc[jt,0]
        for h in range(2):
            a('v_cvt_pk_bf16_f32 v%d, v%d, v%d' % (t, A+2*h, A+2*h+1))
            a('v_lshlrev_b32 v%d, 16, v%d' % (A+2*h, t))
            a('v_and_b32 v%d, 0xffff0000, v%d' % (A+2*h+1, t))
            a('v_lshlrev_b32 v%d, 16, v%d' % (t, hh+2*jt+h))
            a('v_and_b32 v%d, 0xffff0000, v%d' % (t2, hh+2*jt+h))
            a('v_add_f32 v%d, v%d, v%d' % (A+2*h, A+2*h, t))
            a('v_add_f32 v%d, v%d, v%d' % (A+2*h+1, A+2*h+1, t2))
            a('v_cvt_pk_bf16_f32 v%d, v%d, v%d' % (hh+2*jt+h, A+2*h, A+2*h+1))
        a('buffer_store_dwordx2 %s, v%d, s[12:15], s6 offen offset:%d' % (vr(hh+2*jt,2), vh, 32*jt))
    kend(a, name)
    return name, R.hi, '; @launch kernel=k5_kernel grid=(256,1,1) block=(256,1,1) lds=81920'
```

```python
import sys
sys.path.insert(0, 'gen')
from common import *
from k1 import gen_k1, gen_k3
from k2 import gen_k2
gens = [gen_k1, gen_k2, gen_k3]
try:
    from k45 import gen_k4, gen_k5
    gens += [gen_k4, gen_k5]
except ImportError:
    pass
a = Asm()
info = [g(a) for g in gens]
ref = open('sequential_preLN__spectral_gfnet__geglu_ffn__prompt.s.ref').read().split('\n')
hdr = [l for l in ref if l.startswith(';') and not l.startswith('; @launch')]
out = '\n'.join(hdr) + '\n' + '\n'.join(i[2] for i in info) + '\n'
out += '.amdgcn_target "amdgcn-amd-amdhsa--gfx950"\n.text\n' + a.text()
out += '.section .rodata,"a"\n' + ''.join(kdesc(i[0], i[1]) for i in info)
dst = sys.argv[1] if len(sys.argv) > 1 else 'sequential_preLN__spectral_gfnet__geglu_ffn__prompt.s'
open(dst, 'w').write(out)
print([(i[0], i[1]) for i in info], 'nops', a.nnop, 'lines', len(a.lines))
```

```python
from asmlib import *
import math
Z1_OFF=0; Z2_OFF=0x280000; TA_OFF=0x500000; TCOLS=324; WMAX_OFF=0x7A0000
H_OFF=0x800000; LN2_OFF=0xA80000; GU_OFF=0xD00000
WDP_OFF=0x1400000
ZB=320*8192; XB=2048*1280; WB=2048*642; GUB=2048*3456; WGB=640*3456; WDB=1728*1280

def kstart(a, name, nwg):
    a.hist = []
    a.raw('.globl %s\n.p2align 8\n.type %s,@function' % (name, name))
    a.label(name)
    a('s_cmp_ge_u32 s2, %d' % nwg)
    a('s_cbranch_scc1 %s_end' % name)
def kend(a, name):
    a.label(name + '_end')
    a('s_endpgm')
def ldptr(a, s, koff):
    a('s_load_dwordx2 %s, s[0:1], %d' % (sr(s,2), koff))
def mksrd(a, s, nbytes, add=0, src=None):
    b = s if src is None else src
    if add:
        a('s_add_u32 s%d, s%d, 0x%x' % (s, b, add))
        a('s_addc_u32 s%d, s%d, 0' % (s+1, b+1))
    elif src is not None:
        a('s_mov_b32 s%d, s%d' % (s, b)); a('s_mov_b32 s%d, s%d' % (s+1, b+1))
    a('s_mov_b32 s%d, 0x%x' % (s+2, nbytes))
    a('s_mov_b32 s%d, 0x00020000' % (s+3))

def cs(a, vp, N, vc, vs, tmp=None):
    t = vs if tmp is None else tmp
    a('v_cvt_f32_u32 v%d, v%d' % (t, vp))
    a('v_mul_f32 v%d, %s, v%d' % (t, f32(1.0/N), t))
    a('v_cos_f32 v%d, v%d' % (vc, t))
    a('v_sin_f32 v%d, v%d' % (vs, t))

def wave_reduce(a, v, t, op='v_add_f32'):
    for m in ('quad_perm:[1,0,3,2]','quad_perm:[2,3,0,1]','row_half_mirror','row_mirror'):
        a('%s_dpp v%d, v%d, v%d %s row_mask:0xf bank_mask:0xf' % (op, v, v, v, m))
    for sw in ('v_permlane16_swap_b32','v_permlane32_swap_b32'):
        a('v_mov_b32 v%d, v%d' % (t, v))
        a('%s v%d, v%d' % (sw, v, t))
        a('%s v%d, v%d, v%d' % (op, v, v, t))

def bfround(a, v):
    a('v_cvt_pk_bf16_f32 v%d, v%d, v%d' % (v, v, v))
    a('v_lshlrev_b32 v%d, 16, v%d' % (v, v))

def layernorm(a, R, xf, outp):
    mk = R.mark()
    s = R.a(); t = R.a(); m = R.a(); q = R.a(); e = R.a(); q2 = R.a(); e2 = R.a()
    a('v_add_f32 v%d, v%d, v%d' % (s, xf, xf+1))
    for i in range(2,10): a('v_add_f32 v%d, v%d, v%d' % (s, s, xf+i))
    wave_reduce(a, s, t)
    a('v_mul_f32 v%d, %s, v%d' % (m, f32(1.0/640), s))
    a('v_sub_f32 v%d, v%d, v%d' % (t, xf, m))
    a('v_mul_f32 v%d, v%d, v%d' % (s, t, t))
    for i in range(1,10):
        a('v_sub_f32 v%d, v%d, v%d' % (t, xf+i, m))
        a('v_fmac_f32 v%d, v%d, v%d' % (s, t, t))
    wave_reduce(a, s, t)
    a('v_mul_f32 v%d, %s, v%d' % (s, f32(1.0/640), s))
    bfround(a, s); bfround(a, m)
    a('v_add_f32 v%d, %s, v%d' % (s, f32(1e-5), s))
    bfround(a, s)
    a('v_sqrt_f32 v%d, v%d' % (s, s))
    bfround(a, s)
    a('v_rcp_f32 v%d, v%d' % (t, s))
    for i in range(5):
        x0 = xf+2*i; x1 = x0+1
        a('v_sub_f32 v%d, v%d, v%d' % (x0, x0, m))
        a('v_sub_f32 v%d, v%d, v%d' % (x1, x1, m))
        a('v_cvt_pk_bf16_f32 v%d, v%d, v%d' % (x1, x0, x1))
        a('v_lshlrev_b32 v%d, 16, v%d' % (x0, x1))
        a('v_and_b32 v%d, 0xffff0000, v%d' % (x1, x1))
        a('v_mul_f32 v%d, v%d, v%d' % (q, x0, t))
        a('v_mul_f32 v%d, v%d, v%d' % (q2, x1, t))
        a('v_fma_f32 v%d, -v%d, v%d, v%d' % (e, q, s, x0))
        a('v_fma_f32 v%d, -v%d, v%d, v%d' % (e2, q2, s, x1))
        a('v_fmac_f32 v%d, v%d, v%d' % (q, e, t))
        a('v_fmac_f32 v%d, v%d, v%d' % (q2, e2, t))
        a('v_cvt_pk_bf16_f32 v%d, v%d, v%d' % (outp+i, q, q2))
    R.release(mk)

def mfma16(a, d, A, B, c, ty='f16'):
    a('v_mfma_f32_16x16x32_%s %s, %s, %s, %s' % (ty, vr(d,4), vr(A,4), vr(B,4), '0' if c is None else vr(c,4)))

def cmul_tw(a, dr, di, tc, ts, outr, outi, sign):
    a('v_mul_f32 v%d, v%d, v%d' % (outr, dr, tc))
    a('v_mul_f32 v%d, v%d, v%d' % (outi, di, tc))
    if sign < 0:
        a('v_fmac_f32 v%d, v%d, v%d' % (outr, di, ts))
        a('v_fma_f32 v%d, -v%d, v%d, v%d' % (outi, dr, ts, outi))
    else:
        a('v_fma_f32 v%d, -v%d, v%d, v%d' % (outr, di, ts, outr))
        a('v_fmac_f32 v%d, v%d, v%d' % (outi, dr, ts))

def load_wmax_ef(a, R, srd, lane, out):
    mk = R.mark()
    d = R.a(4); t = R.a()
    a('v_lshlrev_b32 v%d, 4, v%d' % (t, lane))
    a('buffer_load_dwordx4 %s, v%d, %s, 0 offen' % (vr(d,4), t, sr(srd,4)))
    return (d, t, mk)
def finish_wmax_ef(a, R, st, out):
    d, t, mk = st
    a('v_max_u32 v%d, v%d, v%d' % (d, d, d+1))
    a('v_max3_u32 v%d, v%d, v%d, v%d' % (out, d, d+2, d+3))
    wave_reduce(a, out, t, 'v_max_u32')
    a('v_lshrrev_b32 v%d, 7, v%d' % (out, out))
    a('v_max_u32 v%d, 8, v%d' % (out, out))
    a('v_min_u32 v%d, 0xfa, v%d' % (out, out))

def kdesc(name, vgpr, sgpr=96):
    v = (vgpr + 7)//8*8
    return '''.p2align 6
.amdhsa_kernel %s
  .amdhsa_next_free_vgpr %d
  .amdhsa_next_free_sgpr %d
  .amdhsa_accum_offset %d
  .amdhsa_group_segment_fixed_size 0
  .amdhsa_kernarg_size 80
  .amdhsa_user_sgpr_count 2
  .amdhsa_user_sgpr_kernarg_segment_ptr 1
  .amdhsa_system_sgpr_workgroup_id_x 1
.end_amdhsa_kernel
''' % (name, v, sgpr, v)

import os
STAMP = 'P' in os.environ.get('FL','')
class Stamper:
    def __init__(self, a, wgsel=0):
        self.a = a; self.n = 0; self.wg = wgsel
        if STAMP:
            a('s_load_dwordx2 s[88:89], s[0:1], 64')
    def __call__(self):
        if not STAMP: return
        self.a('s_memtime s[%d:%d]' % (60+2*self.n, 61+2*self.n)); self.n += 1
    def dump(self, wave_sreg):
        if not STAMP: return
        a = self.a
        self()
        a('s_waitcnt lgkmcnt(0)')
        lab = 'stamp_skip_%d' % len(a.lines)
        a('s_cmp_lg_u32 s2, %d' % self.wg)
        a('s_cbranch_scc1 %s' % lab)
        a('s_mov_b32 s90, 256'); a('s_mov_b32 s91, 0x00020000')
        a('s_lshl_b32 s92, s%d, 5' % wave_sreg)
        a('s_mov_b64 exec, 1')
        a('v_mov_b32 v1, 0')
        for i in range(self.n):
            a('s_sub_u32 s93, s%d, s60' % (60+2*i))
            a('v_mov_b32 v2, s93')
            a('buffer_store_dword v2, v1, s[88:91], s92 offen offset:%d' % (4*i))
        a.label(lab)
```

```python
from common import *

def row_setup(a, R):
    lane = R.a(); l15 = R.a(); g = R.a(); xo = R.a()
    a('v_lshrrev_b32 v%d, 6, v0' % lane)
    a('v_readfirstlane_b32 s3, v%d' % lane)
    a('v_and_b32 v%d, 63, v0' % lane)
    a('v_and_b32 v%d, 15, v0' % l15)
    a('v_bfe_u32 v%d, v0, 4, 2' % g)
    a('v_mul_u32_u24 v%d, 320, v%d' % (xo, g))
    a('v_lshl_add_u32 v%d, v%d, 2, v%d' % (xo, l15, xo))
    a('s_lshr_b32 s22, s2, 5')
    a('s_and_b32 s23, s2, 31')
    a('s_lshl_b32 s20, s22, 3')
    a('s_add_u32 s20, s20, s3')
    a('s_lshl_b32 s20, s20, 5')
    a('s_add_u32 s20, s20, s23')
    a('s_mul_i32 s20, s20, 1280')
    a('s_lshl_b32 s21, s23, 8')
    a('s_lshl_b32 s22, s22, 5')
    a('s_add_u32 s21, s21, s22')
    a('s_mul_i32 s24, s3, 1280')
    return lane, l15, g, xo

def gen_k1(a):
    name = 'k1_kernel'
    R = Regs(1)
    kstart(a, name, 256)
    ST = Stamper(a, 40); ST()
    ldptr(a, 4, 0); ldptr(a, 8, 8); ldptr(a, 12, 16); ldptr(a, 16, 72)
    lane, l15, g, xo = row_setup(a, R)
    a('s_waitcnt lgkmcnt(0)')
    ST()
    mksrd(a, 28, TCOLS*8192, TA_OFF, 16)
    mksrd(a, 32, 1024, WMAX_OFF, 16)
    mksrd(a, 4, XB); mksrd(a, 8, WB); mksrd(a, 12, WB); mksrd(a, 16, ZB)
    xd = R.a(5)
    for i in range(5):
        a('buffer_load_dword v%d, v%d, s[4:7], s20 offen offset:%d' % (xd+i, xo, 64*i))
    wr = R.a(8,4); wi = R.a(8,4); wdst = R.a(); tt = R.a(); wcol = R.a()
    a('v_mov_b32 v%d, 0' % wdst)
    a('s_mov_b32 s48, 0')
    a('s_and_b32 s25, s3, 3')
    a('s_cmp_eq_u32 s25, 3')
    a('s_cbranch_scc1 k1_now1')
    a('v_and_b32 v%d, 255, v0' % tt)
    a('v_min_u32 v%d, 161, v%d' % (tt, tt))
    a('s_and_b32 s26, s2, 63')
    a('s_lshr_b32 s27, s2, 6')
    a('s_lshl_b32 s36, s27, 8')
    a('s_add_u32 s36, s36, s26')
    a('s_cmp_ge_u32 s3, 4')
    a('s_cselect_b32 s37, 1, 0')
    for idx in range(8):
        a('s_add_u32 s38, s36, %d' % (1024*(idx>>2) + 64*(idx&3)))
        a('s_sub_u32 s39, 2048, s38')
        a('s_and_b32 s39, s39, 2047')
        a('s_cmp_eq_u32 s37, 1')
        a('s_cselect_b32 s38, s39, s38')
        a('s_mul_i32 s%d, s38, 642' % (40+idx))
    a('s_lshr_b32 s38, s26, 4')
    a('s_lshl_b32 s38, s38, 6')
    a('s_lshl_b32 s39, s27, 4')
    a('s_add_u32 s38, s38, s39')
    a('s_and_b32 s39, s26, 15')
    a('s_add_u32 s38, s38, s39')
    a('s_lshl_b32 s48, s38, 5')
    a('s_cmp_eq_u32 s37, 1')
    a('s_cselect_b32 s38, 320, 0')
    a('s_cselect_b32 s39, -1, 1')
    a('s_cselect_b32 s49, 0, 320')
    a('s_cselect_b32 s50, 162, 0')
    a('s_sub_u32 s51, 323, s50')
    a('v_mul_lo_u32 v%d, v%d, s39' % (wcol, tt))
    a('v_add_u32 v%d, s38, v%d' % (wcol, wcol))
    a('v_add_u32 v%d, s50, v%d' % (wdst, tt))
    a('v_cmp_eq_u32 vcc, 161, v%d' % tt)
    a('v_mov_b32 v%d, s49' % tt)
    a('v_cndmask_b32 v%d, v%d, v%d, vcc' % (wcol, wcol, tt))
    a('v_mov_b32 v%d, s51' % tt)
    a('v_cndmask_b32 v%d, v%d, v%d, vcc' % (wdst, wdst, tt))
    a('v_lshlrev_b32 v%d, 1, v%d' % (wcol, wcol))
    a('v_lshlrev_b32 v%d, 13, v%d' % (wdst, wdst))
    for idx in range(8):
        a('buffer_load_ushort v%d, v%d, s[8:11], s%d offen' % (wr+idx, wcol, 40+idx))
        a('buffer_load_ushort v%d, v%d, s[12:15], s%d offen' % (wi+idx, wcol, 40+idx))
    a.label('k1_now1')
    B0 = {}; B1 = {}
    for cb in range(2):
        for c in range(2):
            B0[cb,c] = R.a(4); B1[cb,c] = R.a(4)
    A1 = R.a(4); A0 = R.a(4)
    Are = R.a(4); Aim = R.a(4)
    twc = R.a(8); tws = R.a(8)
    p = R.a(); k1 = R.a(); n1 = R.a(); c0 = R.a(); s0 = R.a(); c1 = R.a(); s1 = R.a()
    for cb in range(2):
        a('v_add_u32 v%d, %d, v%d' % (k1, 16*cb, l15))
        a('v_mul_u32_u24 v%d, 5, v%d' % (n1, g))
        a('v_mul_u32_u24 v%d, v%d, v%d' % (p, n1, k1))
        for i in range(5):
            cs(a, p, 20, c0, s0)
            if i < 4: a('v_add_u32 v%d, v%d, v%d' % (p, p, k1))
            a('v_mul_f32 v%d, 0.25, v%d' % (c0, c0)) if False else None
            a('v_mul_f32 v%d, %s, v%d' % (c0, f32(0.25), c0))
            a('v_mul_f32 v%d, %s, v%d' % (s0, f32(0.25), s0))
            dre = B0[cb,0]+i if i < 4 else B1[cb,0]
            dim = B0[cb,1]+i if i < 4 else B1[cb,1]
            a('v_cvt_pk_f16_f32 v%d, v%d, v%d' % (dre, c0, s0))
            a('v_cvt_pk_f16_f32 v%d, -v%d, v%d' % (dim, s0, c0))
        for c in range(2):
            for i in range(1,4): a('v_mov_b32 v%d, 0' % (B1[cb,c]+i))
        a('v_lshlrev_b32 v%d, 2, v%d' % (n1, g))
        a('v_mul_u32_u24 v%d, v%d, v%d' % (p, n1, k1))
        for r in range(4):
            cs(a, p, 320, twc+4*cb+r, tws+4*cb+r)
            if r < 3: a('v_add_u32 v%d, v%d, v%d' % (p, p, k1))
    for i in range(1,4): a('v_mov_b32 v%d, 0' % (A1+i))
    a('v_mul_u32_u24 v%d, v%d, v%d' % (p, n1, l15))
    for jj in range(2):
        for (cc, ss) in ((c0,s0),(c1,s1)):
            a('v_and_b32 v%d, 15, v%d' % (k1, p))
            cs(a, k1, 16, cc, ss)
            a('v_add_u32 v%d, v%d, v%d' % (p, p, l15))
            a('v_mul_f32 v%d, %s, v%d' % (cc, f32(0.25), cc))
            a('v_mul_f32 v%d, %s, v%d' % (ss, f32(0.25), ss))
        a('v_cvt_pk_f16_f32 v%d, v%d, v%d' % (Are+jj, c0, c1))
        a('v_cvt_pk_f16_f32 v%d, v%d, v%d' % (Are+2+jj, s0, s1))
        a('v_cvt_pk_f16_f32 v%d, -v%d, -v%d' % (Aim+jj, s0, s1))
        a('v_mov_b32 v%d, v%d' % (Aim+2+jj, Are+jj))
    xf = R.a(10); up = R.a(5)
    ST()
    a('s_cmp_eq_u32 s25, 3')
    a('s_cbranch_scc1 k1_w0')
    a('s_waitcnt vmcnt(16)')
    a('s_branch k1_w1')
    a.label('k1_w0')
    a('s_waitcnt vmcnt(0)')
    a.label('k1_w1')
    ST()
    for i in range(5):
        a('v_lshlrev_b32 v%d, 16, v%d' % (xf+2*i, xd+i))
        a('v_and_b32 v%d, 0xffff0000, v%d' % (xf+2*i+1, xd+i))
    layernorm(a, R, xf, up)
    for i in range(5):
        a('v_lshlrev_b32 v%d, 16, v%d' % (c0, up+i))
        a('v_and_b32 v%d, 0xffff0000, v%d' % (s0, up+i))
        a('v_cvt_pk_f16_f32 v%d, v%d, v%d' % (A0+i if i < 4 else A1, c0, s0))
    D = {}
    for cb in range(2):
        for c in range(2):
            D[cb,c] = R.a(4)
            mfma16(a, D[cb,c], A0, B0[cb,c], None)
    for cb in range(2):
        for c in range(2):
            mfma16(a, D[cb,c], A1, B1[cb,c], D[cb,c])
    B2 = [R.a(4), R.a(4)]
    tr_ = R.a(4); ti_ = R.a(4)
    for cb in range(2):
        for r in range(4):
            cmul_tw(a, D[cb,0]+r, D[cb,1]+r, twc+4*cb+r, tws+4*cb+r, tr_+r, ti_+r, -1)
        a('v_cvt_pk_f16_f32 v%d, v%d, v%d' % (B2[cb], tr_, tr_+1))
        a('v_cvt_pk_f16_f32 v%d, v%d, v%d' % (B2[cb]+1, tr_+2, tr_+3))
        a('v_cvt_pk_f16_f32 v%d, v%d, v%d' % (B2[cb]+2, ti_, ti_+1))
        a('v_cvt_pk_f16_f32 v%d, v%d, v%d' % (B2[cb]+3, ti_+2, ti_+3))
    for cb in range(2):
        mfma16(a, D[cb,0], Are, B2[cb], None)
        mfma16(a, D[cb,1], Aim, B2[cb], None)
    la = R.a()
    a('v_add_u32 v%d, s24, v%d' % (la, xo))
    for cb in range(2):
        for r in range(4):
            a('v_cvt_pk_f16_f32 v%d, v%d, v%d' % (D[cb,0]+r, D[cb,0]+r, D[cb,1]+r))
    for r in range(4):
        a('ds_write_b32 v%d, v%d offset:%d' % (la, D[0,0]+r, 80*r))
    a('s_mov_b32 s52, 0x000f000f')
    a('s_mov_b32 exec_lo, s52')
    a('s_mov_b32 exec_hi, s52')
    for r in range(4):
        a('ds_write_b32 v%d, v%d offset:%d' % (la, D[1,0]+r, 80*r+64))
    a('s_mov_b64 exec, -1')
    ST()
    mx = R.a(); t2 = R.a()
    a('v_mov_b32 v%d, 0' % mx)
    a('s_cmp_eq_u32 s25, 3')
    a('s_cbranch_scc1 k1_now2')
    a('s_waitcnt vmcnt(0)')
    for idx in range(8):
        a('v_lshl_or_b32 v%d, v%d, 16, v%d' % (wr+idx, wi+idx, wr+idx))
    a('buffer_store_dwordx4 %s, v%d, s[28:31], s48 offen' % (vr(wr,4), wdst))
    a('buffer_store_dwordx4 %s, v%d, s[28:31], s48 offen offset:16' % (vr(wr+4,4), wdst))
    for idx in range(8):
        a('v_and_b32 v%d, 0x7fff7fff, v%d' % (t2, wr+idx))
        a('v_pk_max_u16 v%d, v%d, v%d' % (mx, mx, t2))
    a('v_lshrrev_b32 v%d, 16, v%d' % (t2, mx))
    a('v_and_b32 v%d, 0xffff, v%d' % (mx, mx))
    a('v_max_u32 v%d, v%d, v%d' % (mx, mx, t2))
    wave_reduce(a, mx, t2, 'v_max_u32')
    a.label('k1_now2')
    a('s_lshl_b32 s26, s3, 2')
    a('s_add_u32 s26, s26, 10240')
    a('v_mov_b32 v%d, s26' % t2)
    a('ds_write_b32 v%d, v%d' % (t2, mx))
    a('s_waitcnt lgkmcnt(0)')
    ST()
    a('s_barrier')
    ST()
    a('s_cmp_ge_u32 s3, 5')
    a('s_cbranch_scc1 k1_nost')
    o = R.a(8,4)
    a('v_lshlrev_b32 v%d, 2, v0' % la)
    for q in range(4):
        a('ds_read2st64_b32 %s, v%d offset0:%d offset1:%d' % (vr(o+2*q,2), la, 10*q, 10*q+5))
    a('v_lshlrev_b32 v%d, 13, v0' % t2)
    a('s_waitcnt lgkmcnt(0)')
    a('buffer_store_dwordx4 %s, v%d, s[16:19], s21 offen' % (vr(o,4), t2))
    a('buffer_store_dwordx4 %s, v%d, s[16:19], s21 offen offset:16' % (vr(o+4,4), t2))
    if STAMP: a('s_waitcnt vmcnt(0)')
    ST.dump(3)
    a('s_endpgm')
    a.label('k1_nost')
    a('s_cmp_lg_u32 s3, 7')
    a('s_cbranch_scc1 %s_end' % name)
    a('v_mov_b32 v%d, 10240' % la)
    a('ds_read_b128 %s, v%d' % (vr(o,4), la))
    a('ds_read_b128 %s, v%d offset:16' % (vr(o+4,4), la))
    a('s_lshl_b32 s26, s2, 2')
    a('v_mov_b32 v%d, 0' % t2)
    a('s_waitcnt lgkmcnt(0)')
    a('v_max3_u32 v%d, v%d, v%d, v%d' % (mx, o, o+1, o+2))
    a('v_max3_u32 v%d, v%d, v%d, v%d' % (mx, mx, o+3, o+4))
    a('v_max3_u32 v%d, v%d, v%d, v%d' % (mx, mx, o+5, o+6))
    a('v_max_u32 v%d, v%d, v%d' % (mx, mx, o+7))
    a('s_mov_b64 exec, 1')
    a('buffer_store_dword v%d, v%d, s[32:35], s26 offen' % (mx, t2))
    kend(a, name)
    return name, R.hi, '; @launch kernel=k1_kernel grid=(256,1,1) block=(512,1,1) lds=10496'

def gen_k3(a):
    name = 'k3_kernel'
    R = Regs(1)
    kstart(a, name, 256)
    ST = Stamper(a, 40); ST()
    ldptr(a, 4, 0); ldptr(a, 16, 72)
    lane, l15, g, xo = row_setup(a, R)
    a('s_waitcnt lgkmcnt(0)')
    ST()
    mksrd(a, 28, XB, H_OFF, 16)
    mksrd(a, 32, 1024, WMAX_OFF, 16)
    mksrd(a, 36, XB, LN2_OFF, 16)
    mksrd(a, 4, XB); mksrd(a, 16, ZB, Z2_OFF)
    zd = R.a(8,4); t2 = R.a(); la = R.a()
    a('s_cmp_ge_u32 s3, 5')
    a('s_cbranch_scc1 k3_nold')
    a('v_lshlrev_b32 v%d, 13, v0' % t2)
    a('buffer_load_dwordx4 %s, v%d, s[16:19], s21 offen' % (vr(zd,4), t2))
    a('buffer_load_dwordx4 %s, v%d, s[16:19], s21 offen offset:16' % (vr(zd+4,4), t2))
    a.label('k3_nold')
    ef = R.a()
    st = load_wmax_ef(a, R, 32, lane, ef)
    xd = R.a(5)
    for i in range(5):
        a('buffer_load_dword v%d, v%d, s[4:7], s20 offen offset:%d' % (xd+i, xo, 64*i))
    Bre = R.a(4); Bim = R.a(4)
    twc = R.a(8); tws = R.a(8)
    H = {(ob,k): R.a(4) for ob in range(2) for k in 'csn'}
    p = R.a(); k1 = R.a(); n1 = R.a(); c0 = R.a(); s0 = R.a(); c1 = R.a(); s1 = R.a(); g4 = R.a()
    a('v_lshlrev_b32 v%d, 2, v%d' % (g4, g))
    a('v_mul_u32_u24 v%d, v%d, v%d' % (p, g4, l15))
    for i in range(4):
        a('v_and_b32 v%d, 15, v%d' % (k1, p))
        cs(a, k1, 16, c0, s0)
        a('v_mul_f32 v%d, %s, v%d' % (c0, f32(0.25), c0))
        a('v_mul_f32 v%d, %s, v%d' % (s0, f32(0.25), s0))
        a('v_cvt_pk_f16_f32 v%d, v%d, -v%d' % (Bre+i, c0, s0))
        a('v_cvt_pk_f16_f32 v%d, v%d, v%d' % (Bim+i, s0, c0))
        cs(a, p, 320, twc+i, tws+i)
        a('v_lshl_add_u32 v%d, v%d, 4, v%d' % (k1, l15, p))
        cs(a, k1, 320, twc+4+i, tws+4+i)
        if i < 3: a('v_add_u32 v%d, v%d, v%d' % (p, p, l15))
    a('v_cmp_eq_u32 vcc, 0, v%d' % g)
    a('v_cndmask_b32 v%d, 0, 1.0, vcc' % la)
    for ob in range(2):
        a('v_lshrrev_b32 v%d, 2, v%d' % (n1, l15))
        a('v_mul_u32_u24 v%d, 5, v%d' % (n1, n1))
        if ob == 0:
            a('v_and_b32 v%d, 3, v%d' % (k1, l15))
            a('v_add_u32 v%d, v%d, v%d' % (n1, n1, k1))
        else:
            a('v_add_u32 v%d, 4, v%d' % (n1, n1))
        a('v_mul_u32_u24 v%d, v%d, v%d' % (p, g4, n1))
        for jj in range(4):
            if jj == 2: a('v_mad_u32_u24 v%d, 12, v%d, v%d' % (p, n1, p))
            for (cc, ss) in ((c0,s0),(c1,s1)):
                cs(a, p, 20, cc, ss)
                a('v_add_u32 v%d, v%d, v%d' % (p, p, n1))
                if jj >= 2:
                    a('v_mul_f32 v%d, v%d, v%d' % (cc, la, cc))
                    a('v_mul_f32 v%d, v%d, v%d' % (ss, la, ss))
            a('v_cvt_pk_f16_f32 v%d, v%d, v%d' % (H[ob,'c']+jj, c0, c1))
            a('v_cvt_pk_f16_f32 v%d, v%d, v%d' % (H[ob,'s']+jj, s0, s1))
            a('v_cvt_pk_f16_f32 v%d, -v%d, -v%d' % (H[ob,'n']+jj, s0, s1))
    ST()
    a('s_waitcnt vmcnt(5)')
    ST()
    finish_wmax_ef(a, R, st, ef)
    a('v_lshlrev_b32 v%d, 23, v%d' % (ef, ef))
    a('v_mul_f32 v%d, %s, v%d' % (ef, f32(0.1), ef))
    a('s_cmp_ge_u32 s3, 5')
    a('s_cbranch_scc1 k3_nowr')
    a('v_lshlrev_b32 v%d, 2, v0' % la)
    for q in range(4):
        a('ds_write2st64_b32 v%d, v%d, v%d offset0:%d offset1:%d' % (la, zd+2*q, zd+2*q+1, 10*q, 10*q+5))
    a.label('k3_nowr')
    a('s_waitcnt lgkmcnt(0)')
    a('s_barrier')
    ST()
    A = [R.a(4), R.a(4)]
    a('v_add_u32 v%d, s24, v%d' % (la, xo))
    a('v_and_b32 v%d, 3, v%d' % (k1, l15))
    a('v_mul_u32_u24 v%d, 320, v%d' % (t2, g))
    a('v_lshl_add_u32 v%d, v%d, 2, v%d' % (t2, k1, t2))
    a('v_add_u32 v%d, s24, v%d' % (t2, t2))
    a('ds_read2_b32 %s, v%d offset0:0 offset1:20' % (vr(A[0],2), la))
    a('ds_read2_b32 %s, v%d offset0:40 offset1:60' % (vr(A[0]+2,2), la))
    a('ds_read2_b32 %s, v%d offset0:16 offset1:36' % (vr(A[1],2), t2))
    a('ds_read2_b32 %s, v%d offset0:56 offset1:76' % (vr(A[1]+2,2), t2))
    a('s_waitcnt lgkmcnt(0)')
    D = {}
    for rb in range(2):
        for c in range(2):
            D[rb,c] = R.a(4)
            mfma16(a, D[rb,c], A[rb], Bre if c == 0 else Bim, None)
    Tr = R.a(4); Ti = R.a(4); tr_ = R.a(4); ti_ = R.a(4)
    for rb in range(2):
        for r in range(4):
            cmul_tw(a, D[rb,0]+r, D[rb,1]+r, twc+4*rb+r, tws+4*rb+r, tr_+r, ti_+r, +1)
        a('v_cvt_pk_f16_f32 v%d, v%d, v%d' % (Tr+2*rb, tr_, tr_+1))
        a('v_cvt_pk_f16_f32 v%d, v%d, v%d' % (Tr+2*rb+1, tr_+2, tr_+3))
        a('v_cvt_pk_f16_f32 v%d, v%d, v%d' % (Ti+2*rb, ti_, ti_+1))
        a('v_cvt_pk_f16_f32 v%d, v%d, v%d' % (Ti+2*rb+1, ti_+2, ti_+3))
    for ob in range(2):
        mfma16(a, D[ob,0], H[ob,'c'], Tr, None)
        mfma16(a, D[ob,1], H[ob,'s'], Tr, None)
    for ob in range(2):
        mfma16(a, D[ob,0], H[ob,'n'], Ti, D[ob,0])
        mfma16(a, D[ob,1], H[ob,'c'], Ti, D[ob,1])
    xf = R.a(10); hp = R.a(5); lp = R.a(5)
    ST()
    a('s_waitcnt vmcnt(0)')
    for i in range(5):
        orr = D[0,0]+i if i < 4 else D[1,0]
        oi = D[0,1]+i if i < 4 else D[1,1]
        a('v_mul_f32 v%d, v%d, v%d' % (c0, orr, ef))
        a('v_mul_f32 v%d, v%d, v%d' % (s0, oi, ef))
        a('v_cvt_pk_bf16_f32 v%d, v%d, v%d' % (c1, c0, s0))
        a('v_lshlrev_b32 v%d, 16, v%d' % (c0, c1))
        a('v_and_b32 v%d, 0xffff0000, v%d' % (s0, c1))
        a('v_lshlrev_b32 v%d, 16, v%d' % (c1, xd+i))
        a('v_and_b32 v%d, 0xffff0000, v%d' % (s1, xd+i))
        a('v_add_f32 v%d, v%d, v%d' % (c0, c0, c1))
        a('v_add_f32 v%d, v%d, v%d' % (s0, s0, s1))
        a('v_cvt_pk_bf16_f32 v%d, v%d, v%d' % (hp+i, c0, s0))
        a('v_lshlrev_b32 v%d, 16, v%d' % (xf+2*i, hp+i))
        a('v_and_b32 v%d, 0xffff0000, v%d' % (xf+2*i+1, hp+i))
        a('buffer_store_dword v%d, v%d, s[28:31], s20 offen offset:%d' % (hp+i, xo, 64*i))
    layernorm(a, R, xf, lp)
    for i in range(5):
        a('buffer_store_dword v%d, v%d, s[36:39], s20 offen offset:%d' % (lp+i, xo, 64*i))
    ST()
    if STAMP: a('s_waitcnt vmcnt(0)')
    ST.dump(3)
    kend(a, name)
    return name, R.hi, '; @launch kernel=k3_kernel grid=(256,1,1) block=(512,1,1) lds=10496'
```

```python
from common import *

def gen_k2(a):
    name = 'k2_kernel'
    R = Regs(1)
    kstart(a, name, 256)
    ldptr(a, 16, 72)
    a('s_cmp_ge_u32 s2, 161')
    a('s_cbranch_scc1 k2_pack')
    ST = Stamper(a, 40); ST()
    lane = R.a(); l15 = R.a(); g = R.a(); g4 = R.a(); k1 = R.a(); zo = R.a()
    a('v_lshrrev_b32 v%d, 6, v0' % lane)
    a('v_readfirstlane_b32 s3, v%d' % lane)
    a('v_and_b32 v%d, 63, v0' % lane)
    a('v_and_b32 v%d, 15, v0' % l15)
    a('v_bfe_u32 v%d, v0, 4, 2' % g)
    a('v_lshlrev_b32 v%d, 2, v%d' % (g4, g))
    a('s_lshl_b32 s4, s3, 4')
    a('v_add_u32 v%d, s4, v%d' % (k1, l15))
    a('v_lshlrev_b32 v%d, 8, v%d' % (zo, l15))
    a('v_lshl_add_u32 v%d, v%d, 4, v%d' % (zo, g, zo))
    a('s_sub_u32 s5, 320, s2')
    a('s_cmp_eq_u32 s2, 0')
    a('s_cselect_b32 s5, 0, s5')
    a('s_lshl_b32 s6, s2, 13')
    a('s_lshl_b32 s7, s5, 13')
    a('s_add_u32 s8, s6, 4096')
    a('s_add_u32 s9, s7, 4096')
    a('s_add_u32 s10, s6, %d' % (162*8192))
    a('s_waitcnt lgkmcnt(0)')
    ST()
    mksrd(a, 20, ZB, Z2_OFF, 16)
    mksrd(a, 28, TCOLS*8192, TA_OFF, 16)
    mksrd(a, 32, 1024, WMAX_OFF, 16)
    mksrd(a, 16, ZB)
    Z = {}
    for col in range(2):
        for rb in range(2):
            for t in range(4):
                Z[col,rb,t] = R.a(4)
                a('buffer_load_dwordx4 %s, v%d, s[16:19], s%d offen offset:%d' % (vr(Z[col,rb,t],4), zo, 6+col+2*rb, 64*t))
    ef = R.a()
    st = load_wmax_ef(a, R, 32, lane, ef)
    TA = R.a(8,4); TB = R.a(8,4); TA2 = R.a(8,4); TB2 = R.a(8,4); to = R.a()
    a('v_lshlrev_b32 v%d, 5, v0' % to)
    for (T, so) in ((TA,'s6'),(TB,'s10')):
        a('buffer_load_dwordx4 %s, v%d, s[28:31], %s offen' % (vr(T,4), to, so))
        a('buffer_load_dwordx4 %s, v%d, s[28:31], %s offen offset:16' % (vr(T+4,4), to, so))
    a('s_mov_b32 s11, %d' % (161*8192))
    a('s_mov_b32 s12, %d' % (323*8192))
    for (T, so) in ((TA2,'s11'),(TB2,'s12')):
        a('buffer_load_dwordx4 %s, v%d, s[28:31], %s offen' % (vr(T,4), to, so))
        a('buffer_load_dwordx4 %s, v%d, s[28:31], %s offen offset:16' % (vr(T+4,4), to, so))
    Bre = [R.a(4) for t in range(4)]; Bim = [R.a(4) for t in range(4)]
    F = {(ob,k): R.a(4) for ob in range(2) for k in 'csn'}
    twc = R.a(8); tws = R.a(8); iwc = Z[0,0,2]; iws = Z[1,0,2]
    p = R.a(); q = R.a(); c0 = R.a(); s0 = R.a(); c1 = R.a(); s1 = R.a(); m = R.a()
    a('v_mul_u32_u24 v%d, v%d, v%d' % (p, g4, k1))
    for t in range(4):
        for i in range(4):
            a('v_and_b32 v%d, 63, v%d' % (q, p))
            cs(a, q, 64, c0, s0)
            if t < 2:
                cs(a, p, 2048, twc+4*t+i, tws+4*t+i)
            a('v_add_u32 v%d, v%d, v%d' % (p, p, k1))
            a('v_mul_f32 v%d, %s, v%d' % (c0, f32(0.125), c0))
            a('v_mul_f32 v%d, %s, v%d' % (s0, f32(0.125), s0))
            a('v_cvt_pk_f16_f32 v%d, v%d, v%d' % (Bre[t]+i, c0, s0))
            a('v_cvt_pk_f16_f32 v%d, -v%d, v%d' % (Bim[t]+i, s0, c0))
        if t < 3: a('v_mad_u32_u24 v%d, 12, v%d, v%d' % (p, k1, p))
    for ob in range(2):
        a('v_add_u32 v%d, %d, v%d' % (m, 16*ob, l15))
        a('v_mul_u32_u24 v%d, v%d, v%d' % (p, g4, m))
        for jj in range(4):
            if jj == 2: a('v_mad_u32_u24 v%d, 12, v%d, v%d' % (p, m, p))
            for (cc, ss) in ((c0,s0),(c1,s1)):
                a('v_and_b32 v%d, 31, v%d' % (q, p))
                cs(a, q, 32, cc, ss)
                a('v_add_u32 v%d, v%d, v%d' % (p, p, m))
                a('v_mul_f32 v%d, %s, v%d' % (cc, f32(0.25), cc))
                a('v_mul_f32 v%d, %s, v%d' % (ss, f32(0.25), ss))
            a('v_cvt_pk_f16_f32 v%d, v%d, v%d' % (F[ob,'c']+jj, c0, c1))
            a('v_cvt_pk_f16_f32 v%d, v%d, v%d' % (F[ob,'s']+jj, s0, s1))
            a('v_cvt_pk_f16_f32 v%d, -v%d, -v%d' % (F[ob,'n']+jj, s0, s1))
    tr = R.a(); ti = R.a(); trs = R.a(); tis = R.a(); sc = R.a()
    a('v_mov_b32 v%d, s2' % p)
    cs(a, p, 640, ti, tr)
    a('v_xor_b32 v%d, 0x80000000, v%d' % (tr, tr))
    a('v_xor_b32 v%d, 0x80000000, v%d' % (ti, ti))
    ST()
    a('s_waitcnt vmcnt(17)')
    ST()
    D = {}
    def step1(col):
        for rb in range(2):
            for c in range(2):
                D[col,rb,c] = R.a(4)
        for t in range(4):
            for rb in range(2):
                for c in range(2):
                    mfma16(a, D[col,rb,c], Z[col,rb,t], (Bre if c == 0 else Bim)[t], None if t == 0 else D[col,rb,c])
    step1(0)
    a('s_waitcnt vmcnt(9)')
    for rb in range(2):
        for t in range(4):
            for i in range(4):
                a('v_xor_b32 v%d, 0x80000000, v%d' % (Z[1,rb,t]+i, Z[1,rb,t]+i))
    step1(1)
    a('s_waitcnt vmcnt(8)')
    finish_wmax_ef(a, R, st, ef)
    a('v_sub_u32 v%d, 252, v%d' % (sc, ef))
    a('v_lshlrev_b32 v%d, 23, v%d' % (sc, sc))
    a('v_mul_f32 v%d, v%d, v%d' % (trs, tr, sc))
    a('v_mul_f32 v%d, v%d, v%d' % (tis, ti, sc))
    tr_ = R.a(4); ti_ = R.a(4)
    P = {}
    O = {}
    for col in range(2):
        Pr = Z[col,0,0]; Pi = Z[col,0,1]
        for rb in range(2):
            for r in range(4):
                cmul_tw(a, D[col,rb,0]+r, D[col,rb,1]+r, twc+4*rb+r, tws+4*rb+r, tr_+r, ti_+r, -1)
            a('v_cvt_pk_f16_f32 v%d, v%d, v%d' % (Pr+2*rb, tr_, tr_+1))
            a('v_cvt_pk_f16_f32 v%d, v%d, v%d' % (Pr+2*rb+1, tr_+2, tr_+3))
            a('v_cvt_pk_f16_f32 v%d, v%d, v%d' % (Pi+2*rb, ti_, ti_+1))
            a('v_cvt_pk_f16_f32 v%d, v%d, v%d' % (Pi+2*rb+1, ti_+2, ti_+3))
        for ob in range(2):
            mfma16(a, D[col,ob,0], F[ob,'c'], Pr, None)
            mfma16(a, D[col,ob,1], F[ob,'c'], Pi, None)
        for ob in range(2):
            mfma16(a, D[col,ob,0], F[ob,'s'], Pi, D[col,ob,0])
            mfma16(a, D[col,ob,1], F[ob,'n'], Pr, D[col,ob,1])
    for ob in range(2):
        a('v_add_u32 v%d, %d, v%d' % (m, 16*ob, l15))
        a('v_add_u32 v%d, s4, v%d' % (q, g4))
        a('v_mul_u32_u24 v%d, v%d, v%d' % (p, q, m))
        for r in range(4):
            cs(a, p, 2048, iwc+4*ob+r, iws+4*ob+r)
            if r < 3: a('v_add_u32 v%d, v%d, v%d' % (p, p, m))
    Hc = [Z[0,1,0], Z[0,1,1]]; Hs = [Z[0,1,2], Z[0,1,3]]; Hn = [Z[1,1,0], Z[1,1,1]]
    a('s_mov_b32 s13, 0x05040100')
    a('s_mov_b32 s14, 0x07060302')
    for t in range(2):
        for jj in range(4):
            tp = 2*t + (jj >> 1); i = 2*(jj & 1)
            a('v_perm_b32 v%d, v%d, v%d, s13' % (Hc[t]+jj, Bre[tp]+i+1, Bre[tp]+i))
            a('v_perm_b32 v%d, v%d, v%d, s14' % (Hs[t]+jj, Bre[tp]+i+1, Bre[tp]+i))
            a('v_perm_b32 v%d, v%d, v%d, s13' % (Hn[t]+jj, Bim[tp]+i+1, Bim[tp]+i))
    ST()
    a('s_waitcnt vmcnt(0)')
    Sr,Si,Dr,Di,Or,Oi,X1r,X1i = [twc+i for i in range(8)]
    X2r,X2i,V1r,V1i,V2r,V2i = [tws+i for i in range(6)]
    a1r,a1i,a2r,a2i = [Z[1,1,2]+i for i in range(4)]
    a('s_cmp_eq_u32 s2, 0')
    a('s_cbranch_scc1 k2_z0')
    for ver in range(2):
      if ver == 1:
        a('s_branch k2_nz')
        a.label('k2_z0')
      for e in range(8):
        ob = e >> 2; r = e & 3
        a('v_lshlrev_b32 v%d, 16, v%d' % (a1r, TA+e))
        a('v_and_b32 v%d, 0xffff0000, v%d' % (a1i, TA+e))
        a('v_lshlrev_b32 v%d, 16, v%d' % (a2r, TB+e))
        a('v_and_b32 v%d, 0xffff0000, v%d' % (a2i, TB+e))
        if ver == 1:
          for (wr_, wi_, T2) in ((a1r,a1i,TA2),(a2r,a2i,TB2)):
            a('v_lshlrev_b32 v%d, 16, v%d' % (c0, T2+e))
            a('v_and_b32 v%d, 0xffff0000, v%d' % (s0, T2+e))
            a('v_add_f32 v%d, v%d, v%d' % (wr_, wr_, c0))
            a('v_sub_f32 v%d, v%d, v%d' % (wi_, wi_, s0))
            a('v_mul_f32 v%d, 0.5, v%d' % (wr_, wr_))
            a('v_mul_f32 v%d, 0.5, v%d' % (wi_, wi_))
        ar = D[0,ob,0]+r; ai = D[0,ob,1]+r; br = D[1,ob,0]+r; bi = D[1,ob,1]+r
        a('''v_add_f32 v{Sr}, v{ar}, v{br}
v_add_f32 v{Si}, v{ai}, v{bi}
v_sub_f32 v{Dr}, v{ar}, v{br}
v_sub_f32 v{Di}, v{ai}, v{bi}
v_mul_f32 v{Or}, v{trs}, v{Dr}
v_mul_f32 v{Oi}, v{trs}, v{Di}
v_fma_f32 v{Or}, -v{tis}, v{Di}, v{Or}
v_fmac_f32 v{Oi}, v{tis}, v{Dr}
v_fma_f32 v{X1r}, v{sc}, v{Sr}, v{Or}
v_fma_f32 v{X1i}, v{sc}, v{Si}, v{Oi}
v_fma_f32 v{X2r}, v{sc}, v{Sr}, -v{Or}
v_fma_f32 v{X2i}, v{sc}, v{Si}, -v{Oi}
v_mul_f32 v{V1r}, v{X1r}, v{a1r}
v_mul_f32 v{V1i}, v{X1r}, v{a1i}
v_mul_f32 v{V2r}, v{X2r}, v{a2r}
v_mul_f32 v{V2i}, v{X2i}, v{a2r}
v_fma_f32 v{V1r}, -v{X1i}, v{a1i}, v{V1r}
v_fmac_f32 v{V1i}, v{X1i}, v{a1r}
v_fmac_f32 v{V2r}, v{X2i}, v{a2i}
v_fma_f32 v{V2i}, -v{X2r}, v{a2i}, v{V2i}
v_add_f32 v{Sr}, v{V1r}, v{V2r}
v_add_f32 v{Si}, v{V1i}, v{V2i}
v_sub_f32 v{Dr}, v{V1r}, v{V2r}
v_sub_f32 v{Di}, v{V1i}, v{V2i}
v_mul_f32 v{Or}, v{tr}, v{Dr}
v_mul_f32 v{Oi}, v{tr}, v{Di}
v_fmac_f32 v{Or}, v{ti}, v{Di}
v_fma_f32 v{Oi}, -v{ti}, v{Dr}, v{Oi}
v_add_f32 v{ar}, v{Sr}, v{Or}
v_add_f32 v{ai}, v{Si}, v{Oi}
v_sub_f32 v{br}, v{Sr}, v{Or}
v_sub_f32 v{bi}, v{Si}, v{Oi}'''.format(**locals()))
    a.label('k2_nz')
    ST()
    la = R.a()
    a('v_lshlrev_b32 v%d, 4, v%d' % (la, lane))
    a('s_lshr_b32 s15, s3, 1')
    a('s_lshl_b32 s15, s15, 10')
    a('s_and_b32 s24, s3, 1')
    a('s_lshl_b32 s24, s24, 3')
    a('s_add_u32 s15, s15, s24')
    lw = R.a()
    a('v_add_u32 v%d, s15, v%d' % (lw, la))
    T = {}
    for col in range(2):
        Pr = Z[col,0,0]; Pi = Z[col,0,1]
        for ob in range(2):
            for h in range(2):
                a('v_cvt_pk_f16_f32 v%d, v%d, v%d' % (Pr+2*ob+h, D[col,ob,0]+2*h, D[col,ob,0]+2*h+1))
                a('v_cvt_pk_f16_f32 v%d, v%d, v%d' % (Pi+2*ob+h, D[col,ob,1]+2*h, D[col,ob,1]+2*h+1))
        for cb in range(2):
            mfma16(a, D[col,cb,0], Pr, F[cb,'c'], None)
            mfma16(a, D[col,cb,1], Pr, F[cb,'s'], None)
        for cb in range(2):
            mfma16(a, D[col,cb,0], Pi, F[cb,'n'], D[col,cb,0])
            mfma16(a, D[col,cb,1], Pi, F[cb,'c'], D[col,cb,1])
    for col in range(2):
        for cb in range(2):
            for r in range(4):
                cmul_tw(a, D[col,cb,0]+r, D[col,cb,1]+r, iwc+4*cb+r, iws+4*cb+r, tr_+r, ti_+r, +1)
            a('v_cvt_pk_f16_f32 v%d, v%d, v%d' % (D[col,cb,0], tr_, tr_+1))
            a('v_cvt_pk_f16_f32 v%d, v%d, v%d' % (D[col,cb,0]+1, tr_+2, tr_+3))
            a('v_cvt_pk_f16_f32 v%d, v%d, v%d' % (D[col,cb,0]+2, ti_, ti_+1))
            a('v_cvt_pk_f16_f32 v%d, v%d, v%d' % (D[col,cb,0]+3, ti_+2, ti_+3))
            for c in range(2):
                a('ds_write_b64 v%d, %s offset:%d' % (lw, vr(D[col,cb,0]+2*c,2), ((col*2+cb)*2+c)*2048))
    a('s_waitcnt lgkmcnt(0)')
    a('s_barrier')
    ST()
    TT = {}
    pool = Bre + Bim + [TA, TA+4, TB, TB+4, TA2, TA2+4, TB2, TB2+4]
    for col in range(2):
        for cb in range(2):
            for c in range(2):
                for t in range(2):
                    TT[col,cb,c,t] = pool.pop()
                    a('ds_read_b128 %s, v%d offset:%d' % (vr(TT[col,cb,c,t],4), la, ((col*2+cb)*2+c)*2048 + t*1024))
    a('v_lshlrev_b32 v%d, 8, v%d' % (zo, l15))
    a('v_lshl_add_u32 v%d, v%d, 4, v%d' % (zo, g, zo))
    a('s_lshl_b32 s24, s3, 6')
    a('v_add_u32 v%d, s24, v%d' % (zo, zo))
    for col in range(2):
        a('s_waitcnt lgkmcnt(%d)' % (8 if col == 0 else 0))
        for t in range(2):
            for cb in range(2):
                mfma16(a, D[col,cb,0], Hc[t], TT[col,cb,0,t], None if t == 0 else D[col,cb,0])
                mfma16(a, D[col,cb,1], Hs[t], TT[col,cb,0,t], None if t == 0 else D[col,cb,1])
            for cb in range(2):
                mfma16(a, D[col,cb,0], Hn[t], TT[col,cb,1,t], D[col,cb,0])
                mfma16(a, D[col,cb,1], Hc[t], TT[col,cb,1,t], D[col,cb,1])
    for col in range(2):
        if col == 1:
            a('s_cmp_eq_u32 s2, s5')
            a('s_cbranch_scc1 %s_end' % name)
        for cb in range(2):
            for r in range(4):
                a('v_cvt_pk_f16_f32 v%d, v%d, %sv%d' % (D[col,cb,0]+r, D[col,cb,0]+r, '-' if col else '', D[col,cb,1]+r))
            a('buffer_store_dwordx4 %s, v%d, s[20:23], s%d offen' % (vr(D[col,cb,0],4), zo, 6+col+2*cb))
    if STAMP: a('s_waitcnt vmcnt(0)')
    ST.dump(3)
    a('s_endpgm')
    a.label('k2_pack')
    ldptr(a, 4, 48); ldptr(a, 8, 32); ldptr(a, 12, 40)
    a('s_sub_u32 s3, s2, 161')
    a('v_mul_u32_u24 v1, 205, v0')
    a('v_lshrrev_b32 v1, 14, v1')
    a('v_mul_u32_u24 v2, 80, v1')
    a('v_sub_u32 v2, v0, v2')
    a('v_mul_u32_u24 v3, 205, v2')
    a('v_lshrrev_b32 v3, 11, v3')
    a('v_mul_u32_u24 v4, 10, v3')
    a('v_sub_u32 v4, v2, v4')
    a('s_mul_i32 s20, s3, 3')
    a('v_add_u32 v1, s20, v1')
    a('v_mul_u32_u24 v5, 1280, v1')
    a('v_lshl_add_u32 v5, v2, 4, v5')
    a('v_mul_u32_u24 v3, 1728, v3')
    a('v_add_u32 v3, v3, v1')
    a('v_mul_u32_u24 v3, 160, v3')
    a('v_lshl_add_u32 v6, v4, 4, v3')
    a('v_mov_b32 v7, 0x7f000000')
    a('v_cmp_gt_u32 vcc, 240, v0')
    a('v_cndmask_b32 v5, v7, v5, vcc')
    a('v_cndmask_b32 v6, v7, v6, vcc')
    a('s_lshl_b32 s21, s3, 12')
    a('v_lshlrev_b32 v8, 4, v0')
    a('v_add_u32 v8, s21, v8')
    a('s_waitcnt lgkmcnt(0)')
    mksrd(a, 16, WDB, WDP_OFF)
    mksrd(a, 4, WDB); mksrd(a, 8, WGB); mksrd(a, 12, WGB)
    for i in range(7):
        a('s_mov_b32 s22, %d' % (i*285*1280))
        a('buffer_load_dwordx4 %s, v5, s[4:7], s22 offen' % vr(12+4*i,4))
    for i in range(6):
        a('s_mov_b32 s22, %d' % (i*95*4096))
        a('buffer_load_dwordx4 %s, v8, s[8:11], s22 offen' % vr(40+8*i,4))
        a('buffer_load_dwordx4 %s, v8, s[12:15], s22 offen' % vr(44+8*i,4))
    for i in range(7):
        a('v_add_u32 v9, %d, v1' % (285*i))
        a('v_cmp_gt_u32 vcc, 1728, v9')
        a('v_add_u32 v9, %d, v6' % (285*160*i))
        a('v_cndmask_b32 v9, v7, v9, vcc')
        a('s_waitcnt vmcnt(%d)' % (6-i+12+ (i)))
        a('buffer_store_dwordx4 %s, v9, s[16:19], 0 offen' % vr(12+4*i,4))
    a('s_waitcnt vmcnt(0)')
    kend(a, name)
    return name, R.hi, '; @launch kernel=k2_kernel grid=(256,1,1) block=(256,1,1) lds=16384'
```

```python
from common import *
import os
FL = os.environ.get('FL','')
MOD = (' nt' if 'N' in FL else '') + (' sc1' if 'S' in FL else '') + (' sc0' if 'T' in FL else '')

def gen_k4(a):
    name = 'k4_kernel'
    R = Regs(1)
    kstart(a, name, 216)
    ldptr(a, 8, 32); ldptr(a, 12, 40); ldptr(a, 16, 72)
    if 't' in FL:
        a('s_memtime s[40:41]'); a('s_memrealtime s[42:43]'); ldptr(a, 48, 64)
    l = R.a(); t = R.a(); t2 = R.a(); t3 = R.a()
    a('v_lshrrev_b32 v%d, 6, v0' % l)
    a('v_readfirstlane_b32 s3, v%d' % l)
    a('v_and_b32 v%d, 63, v0' % l)
    a('s_and_b32 s4, s2, 7')
    a('s_lshr_b32 s5, s2, 3')
    if 'm' not in FL:
        a('s_mul_i32 s4, s4, 27')
        a('s_add_u32 s4, s4, s5')
        a('s_cmp_ge_u32 s4, 108')
        a('s_cselect_b32 s6, 108, 0')
        a('s_cselect_b32 s7, 4, 0')
        a('s_sub_u32 s4, s4, s6')
        a('s_lshr_b32 s5, s4, 2')
        a('s_and_b32 s4, s4, 3')
        a('s_mul_i32 s32, s4, 5')
        a('s_lshr_b32 s32, s32, 1')
        a('s_add_u32 s32, s32, s5')
        a('s_mul_i32 s33, s32, 205')
        a('s_lshr_b32 s33, s33, 11')
        a('s_mul_i32 s33, s33, 10')
        a('s_sub_u32 s32, s32, s33')
        a('s_add_u32 s4, s4, s7')
    else:
        a('s_mov_b32 s32, 0')
    if 'z' in FL:
        a('s_mov_b32 s4, 0')
        a('s_mov_b32 s5, 0')
    a('s_lshr_b32 s6, s3, 1')
    a('s_and_b32 s7, s3, 1')
    vdx = R.a(4); vdw = R.a()
    a('s_lshl_b32 s24, s4, 8')
    a('s_lshl_b32 s25, s3, 5')
    a('s_add_u32 s24, s24, s25')
    a('v_lshrrev_b32 v%d, 3, v%d' % (t, l))
    a('v_add_u32 v%d, s24, v%d' % (t2, t))
    a('v_mul_u32_u24 v%d, 1280, v%d' % (t2, t2))
    a('v_lshrrev_b32 v%d, 4, v%d' % (t3, l))
    a('v_xor_b32 v%d, v%d, v%d' % (t3, t3, l))
    a('v_and_b32 v%d, 7, v%d' % (t3, t3))
    for i in range(4):
        if i & 1: a('v_xor_b32 v%d, 4, v%d' % (vdx+i, t3))
        else: a('v_mov_b32 v%d, v%d' % (vdx+i, t3))
        a('v_lshl_add_u32 v%d, v%d, 4, v%d' % (vdx+i, vdx+i, t2))
        if i: a('v_add_u32 v%d, %d, v%d' % (vdx+i, 8*i*1280, vdx+i))
    a('s_lshl_b32 s25, s3, 3')
    a('v_add_u32 v%d, s25, v%d' % (t2, t))
    a('v_mul_u32_u24 v%d, 3456, v%d' % (t2, t2))
    a('v_lshrrev_b32 v%d, 2, v%d' % (t3, l))
    a('v_and_b32 v%d, 4, v%d' % (t3, t3))
    a('v_xor_b32 v%d, v%d, v%d' % (t3, t3, l))
    a('v_and_b32 v%d, 7, v%d' % (t3, t3))
    a('v_lshl_add_u32 v%d, v%d, 4, v%d' % (vdw, t3, t2))
    a('s_lshl_b32 s25, s5, 7')
    a('v_add_u32 v%d, s25, v%d' % (vdw, vdw))
    a('s_lshl_b32 s26, s3, 12')
    a('s_lshl_b32 s27, s3, 10')
    a('s_waitcnt lgkmcnt(0)')
    mksrd(a, 20, GUB, GU_OFF, 16)
    mksrd(a, 16, XB, LN2_OFF)
    mksrd(a, 8, WGB); mksrd(a, 12, WGB)
    def dma(kt):
        if 'a' in FL: return
        sb = (kt % 3) * 49152
        a('s_lshl_b32 s28, s32, 7')
        a('s_mul_i32 s29, s32, 221184')
        a('s_add_u32 s32, s32, 1')
        a('s_cmp_eq_u32 s32, 10')
        a('s_cselect_b32 s32, 0, s32')
        for i in range(4):
            if 'x' in FL: break
            a('s_add_u32 m0, s26, %d' % (sb + i*1024))
            if 'r' in FL: a('buffer_load_dwordx4 v[%d:%d], v%d, s[16:19], s28 offen' % (100+4*i, 103+4*i, vdx+i))
            else: a('buffer_load_dwordx4 v%d, s[16:19], s28 offen lds' % (vdx+i) + MOD)
        if 'w' in FL: return
        a('s_add_u32 m0, s27, %d' % (sb + 32768))
        a('buffer_load_dwordx4 v%d, s[8:11], s29 offen lds' % vdw + MOD)
        a('s_add_u32 m0, s27, %d' % (sb + 40960))
        a('buffer_load_dwordx4 v%d, s[12:15], s29 offen lds' % vdw + MOD)
    dma(0); dma(1)
    vX = [R.a(4), R.a(4)]; vW = R.a(3)
    a('v_and_b32 v%d, 31, v%d' % (t, l))
    a('s_lshl_b32 s25, s6, 6')
    a('v_add_u32 v%d, s25, v%d' % (t, t))
    rowl = R.a()
    a('v_mov_b32 v%d, v%d' % (rowl, t))
    a('v_lshlrev_b32 v%d, 7, v%d' % (t, t))
    a('v_lshrrev_b32 v%d, 5, v%d' % (t2, l))
    a('v_bfe_u32 v%d, v%d, 1, 3' % (t3, l))
    a('v_xor_b32 v%d, v%d, v%d' % (t3, t3, t2))
    for ks in range(4):
        a('v_xor_b32 v%d, %d, v%d' % (vX[0]+ks, 2*ks, t3))
        a('v_lshl_add_u32 v%d, v%d, 4, v%d' % (vX[0]+ks, vX[0]+ks, t))
        a('v_add_u32 v%d, %d, v%d' % (vX[1]+ks, 98304, vX[0]+ks))
    a('v_bfe_u32 v%d, v%d, 2, 2' % (t, l))
    a('v_lshl_add_u32 v%d, v%d, 3, v%d' % (t3, t2, t))
    a('v_lshlrev_b32 v%d, 7, v%d' % (t3, t3))
    a('v_lshrrev_b32 v%d, 1, v%d' % (t, t))
    a('v_lshlrev_b32 v%d, 6, v%d' % (t, t))
    a('v_and_b32 v%d, 3, v%d' % (vW, l))
    a('v_lshlrev_b32 v%d, 3, v%d' % (vW, vW))
    a('v_and_b32 v%d, 16, v%d' % (vW+1, l))
    a('v_lshl_add_u32 v%d, v%d, 1, v%d' % (vW, vW+1, vW))
    a('s_lshl_b32 s25, s7, 6')
    a('v_add_u32 v%d, s25, v%d' % (vW, vW))
    a('v_xor_b32 v%d, v%d, v%d' % (vW, vW, t))
    a('v_add_u32 v%d, v%d, v%d' % (vW, vW, t3))
    a('v_add_u32 v%d, 32768, v%d' % (vW, vW))
    a('v_add_u32 v%d, 49152, v%d' % (vW+1, vW))
    a('v_add_u32 v%d, 98304, v%d' % (vW+2, vW))
    acc = {(rb,gu): R.a(16) for rb in range(2) for gu in range(2)}
    FX = {(ks,rb): R.a(4) for ks in range(4) for rb in range(2)}
    FW = {(ks,gu): R.a(4) for ks in range(4) for gu in range(2)}
    def reads(kt, ks):
        if 'b' in FL: return
        st = kt % 3
        for gu in range(2):
            for q in range(2):
                a('ds_read_b64_tr_b16 %s, v%d offset:%d' % (vr(FW[ks,gu]+2*q,2), vW+st, ks*2048+q*512+gu*8192))
        for rb in range(2):
            a('ds_read_b128 %s, v%d offset:%d' % (vr(FX[ks,rb],4), vX[st>>1]+ks, rb*4096 + (st&1)*49152))
    def mm(kt, ks):
        if 'c' in FL and kt+ks > 0: return
        for rb in range(2):
            for gu in range(2):
                c = '0' if (kt == 0 and ks == 0) else vr(acc[rb,gu],16)
                a('v_mfma_f32_32x32x16_bf16 %s, %s, %s, %s' % (vr(acc[rb,gu],16), vr(FW[ks,gu],4), vr(FX[ks,rb],4), c))
    for kt in range(10):
        if 'n' not in FL or kt == 9:
            a('s_waitcnt vmcnt(%d)' % (6 if kt < 9 else 0))
            a('s_barrier')
        reads(kt, 0); reads(kt, 1)
        if kt + 2 <= 9: dma(kt+2)
        a('s_waitcnt lgkmcnt(6)')
        reads(kt, 2)
        mm(kt, 0)
        a('s_waitcnt lgkmcnt(6)')
        reads(kt, 3)
        mm(kt, 1)
        a('s_waitcnt lgkmcnt(6)')
        mm(kt, 2)
        a('s_waitcnt lgkmcnt(0)')
        mm(kt, 3)
    vo = R.a()
    a('v_mul_u32_u24 v%d, 3456, v%d' % (vo, rowl))
    a('v_lshrrev_b32 v%d, 5, v%d' % (t2, l))
    a('v_lshl_add_u32 v%d, v%d, 4, v%d' % (vo, t2, vo))
    a('s_mul_i32 s24, s4, %d' % (256*3456))
    a('s_lshl_b32 s25, s5, 7')
    a('s_add_u32 s24, s24, s25')
    a('s_lshl_b32 s25, s7, 6')
    a('s_add_u32 s24, s24, s25')
    a('s_add_u32 s25, s24, %d' % (32*3456))
    c1 = -2*0.7978845608028654*math.log2(math.e)
    a('s_mov_b32 s30, %s' % f32(c1))
    a('s_mov_b32 s31, %s' % f32(c1*0.044715))
    T = [FX[0,0], FX[0,1], FX[1,0], FX[1,1]]
    O = [FW[0,0], FW[0,1], FW[1,0], FW[1,1]]
    oi = 0
    for rb in range(2):
        for qq in range(2):
            o = O[oi]; oi += 1
            for pr in range(4):
                if 'd' in FL: continue
                r0 = 8*qq + 2*pr
                g0 = acc[rb,0]+r0; u0 = acc[rb,1]+r0
                x0, x1, e0, e1 = T[pr], T[pr]+1, T[pr]+2, T[pr]+3
                a('v_cvt_pk_bf16_f32 v%d, v%d, v%d' % (x1, g0, g0+1))
                a('v_cvt_pk_bf16_f32 v%d, v%d, v%d' % (u0, u0, u0+1))
                a('v_lshlrev_b32 v%d, 16, v%d' % (x0, x1))
                a('v_and_b32 v%d, 0xffff0000, v%d' % (x1, x1))
                a('v_mul_f32 v%d, v%d, v%d' % (e0, x0, x0))
                a('v_mul_f32 v%d, v%d, v%d' % (e1, x1, x1))
                a('v_mov_b32 v%d, s30' % g0)
                a('v_fma_f32 v%d, v%d, s31, v%d' % (e0, e0, g0))
                a('v_fma_f32 v%d, v%d, s31, v%d' % (e1, e1, g0))
                a('v_mul_f32 v%d, v%d, v%d' % (e0, e0, x0))
                a('v_mul_f32 v%d, v%d, v%d' % (e1, e1, x1))
                a('v_exp_f32 v%d, v%d' % (e0, e0))
                a('v_exp_f32 v%d, v%d' % (e1, e1))
                a('v_and_b32 v%d, 0xffff0000, v%d' % (u0+1, u0))
                a('v_lshlrev_b32 v%d, 16, v%d' % (u0, u0))
                a('v_add_f32 v%d, 1.0, v%d' % (e0, e0))
                a('v_add_f32 v%d, 1.0, v%d' % (e1, e1))
                a('v_rcp_f32 v%d, v%d' % (e0, e0))
                a('v_rcp_f32 v%d, v%d' % (e1, e1))
                a('v_mul_f32 v%d, v%d, v%d' % (x0, x0, e0))
                a('v_mul_f32 v%d, v%d, v%d' % (x1, x1, e1))
                a('v_cvt_pk_bf16_f32 v%d, v%d, v%d' % (x1, x0, x1))
                a('v_lshlrev_b32 v%d, 16, v%d' % (x0, x1))
                a('v_and_b32 v%d, 0xffff0000, v%d' % (x1, x1))
                a('v_mul_f32 v%d, v%d, v%d' % (x0, x0, u0))
                a('v_mul_f32 v%d, v%d, v%d' % (x1, x1, u0+1))
                a('v_cvt_pk_bf16_f32 v%d, v%d, v%d' % (o+pr, x0, x1))
            a('v_permlane32_swap_b32 v%d, v%d' % (o, o+2))
            a('v_permlane32_swap_b32 v%d, v%d' % (o+1, o+3))
            if 'e' not in FL: a('buffer_store_dwordx4 %s, v%d, s[20:23], s%d offen offset:%d' % (vr(o,4), vo, 24+rb, 32*qq))
    if 't' in FL:
        a('s_memtime s[44:45]'); a('s_memrealtime s[46:47]')
        a('s_waitcnt lgkmcnt(0)')
        mksrd(a, 48, 256)
        a('s_sub_u32 s44, s44, s40'); a('s_sub_u32 s46, s46, s42')
        a('s_lshl_b32 s40, s2, 3'); a('s_add_u32 s40, s40, s3')
        a('s_cmp_ge_u32 s40, 16'); a('s_cbranch_scc1 %s_end' % name)
        a('s_lshl_b32 s40, s40, 3')
        a('v_mov_b32 v2, s44'); a('v_mov_b32 v3, s46'); a('v_mov_b32 v1, 0')
        a('buffer_store_dwordx2 v[2:3], v1, s[48:51], s40 offen')
    kend(a, name)
    return name, R.hi, '; @launch kernel=k4_kernel grid=(216,1,1) block=(512,1,1) lds=147456'

def gen_k5(a):
    name = 'k5_kernel'
    R = Regs(1)
    kstart(a, name, 256)
    ldptr(a, 12, 56); ldptr(a, 16, 72)
    l = R.a(); l15 = R.a(); g = R.a(); t = R.a(); t2 = R.a(); t3 = R.a()
    a('v_lshrrev_b32 v%d, 6, v0' % l)
    a('v_readfirstlane_b32 s3, v%d' % l)
    a('v_and_b32 v%d, 63, v0' % l)
    a('v_and_b32 v%d, 15, v0' % l15)
    a('v_bfe_u32 v%d, v0, 4, 2' % g)
    a('s_and_b32 s4, s2, 7')
    a('s_lshl_b32 s4, s4, 2')
    a('s_bfe_u32 s5, s2, 0x20003')
    a('s_add_u32 s4, s4, s5')
    a('s_lshr_b32 s5, s2, 5')
    a('s_mul_i32 s6, s5, 160')
    vd = R.a(5)
    for i in range(5):
        a('v_add_u32 v%d, %d, v%d' % (t, 64*i, l))
        a('v_mul_u32_u24 v%d, 52429, v%d' % (t2, t))
        a('v_lshrrev_b32 v%d, 19, v%d' % (t2, t2))
        a('v_mul_u32_u24 v%d, 10, v%d' % (t3, t2))
        a('v_sub_u32 v%d, v%d, v%d' % (t, t, t3))
        a('v_lshrrev_b32 v%d, 1, v%d' % (t3, t2))
        a('v_and_b32 v%d, 4, v%d' % (t3, t3))
        a('v_xor_b32 v%d, v%d, v%d' % (t2, t2, t3))
        a('v_mul_u32_u24 v%d, 160, v%d' % (t2, t2))
        a('v_lshl_add_u32 v%d, v%d, 4, v%d' % (vd+i, t, t2))
    vg = R.a(8)
    a('v_lshrrev_b32 v%d, 3, v%d' % (t, l))
    a('v_lshrrev_b32 v%d, 4, v%d' % (t3, l))
    a('v_xor_b32 v%d, v%d, v%d' % (t3, t3, l))
    a('v_and_b32 v%d, 7, v%d' % (t3, t3))
    for j in range(8):
        a('s_add_u32 s24, s3, %d' % (j >> 1))
        a('s_and_b32 s24, s24, 3')
        a('s_lshl_b32 s24, s24, 4')
        a('s_add_u32 s24, s24, %d' % (8*(j&1)))
        a('v_add_u32 v%d, s24, v%d' % (t2, t))
        a('v_mul_u32_u24 v%d, 3456, v%d' % (t2, t2))
        if j & 1: a('v_xor_b32 v%d, 4, v%d' % (vg+j, t3))
        else: a('v_mov_b32 v%d, v%d' % (vg+j, t3))
        a('v_lshl_add_u32 v%d, v%d, 4, v%d' % (vg+j, vg+j, t2))
    a('s_mul_i32 s24, s4, %d' % (64*3456))
    a('s_mul_i32 s25, s3, 896')
    a('s_add_u32 s24, s24, s25')
    a('s_mul_i32 s25, s5, 1728')
    a('s_mul_i32 s26, s3, 448')
    a('s_add_u32 s25, s25, s26')
    a('s_mul_i32 s25, s25, 160')
    a('s_mul_i32 s26, s3, 36864')
    a('s_and_b32 s32, s4, 3')
    a('s_lshl_b32 s32, s32, 1')
    a('s_add_u32 s32, s32, s5')
    a('s_cmp_ge_u32 s32, 7')
    a('s_cselect_b32 s33, 7, 0')
    a('s_sub_u32 s32, s32, s33')
    if 'm' in FL: a('s_mov_b32 s32, 0')
    a('s_mov_b32 s35, s32')
    a('s_cmp_eq_u32 s3, 3')
    a('s_cselect_b32 s36, 6, 99')
    vh = R.a()
    a('s_lshl_b32 s27, s4, 6')
    a('s_lshl_b32 s28, s3, 4')
    a('s_add_u32 s27, s27, s28')
    a('v_add_u32 v%d, s27, v%d' % (t, l15))
    a('v_mul_u32_u24 v%d, 1280, v%d' % (t, t))
    a('v_lshl_add_u32 v%d, v%d, 3, v%d' % (vh, g, t))
    a('s_waitcnt lgkmcnt(0)')
    mksrd(a, 20, XB, H_OFF, 16)
    mksrd(a, 8, WDB, WDP_OFF, 16)
    mksrd(a, 16, GUB, GU_OFF)
    mksrd(a, 12, XB)
    def loads(s):
        if 'a' in FL: return
        a('s_mul_i32 s33, s32, 10240')
        a('s_add_u32 s33, s33, s25')
        a('s_add_u32 s37, s33, 5120')
        a('s_lshl_b32 s34, s32, 7')
        a('s_add_u32 s34, s34, s24')
        for j in range(8):
            if 'x' in FL: break
            a('s_add_u32 m0, s26, %d' % ((s % 2)*18432 + 10240 + j*1024))
            a('buffer_load_dwordx4 v%d, s[16:19], s34 offen lds' % (vg+j) + MOD)
        for i in range(10):
            if 'w' in FL: break
            a('s_add_u32 m0, s26, %d' % ((s % 2)*18432 + i*1024))
            a('buffer_load_dwordx4 v%d, s[8:11], s%d offen lds' % (vd+i%5, 33 if i < 5 else 37) + MOD)
        a('s_add_u32 s32, s32, 1')
        a('s_cmp_eq_u32 s32, 7')
        a('s_cselect_b32 s32, 0, s32')
    loads(0); loads(1)
    vq = R.a(2)
    a('v_bfe_u32 v%d, v%d, 2, 2' % (t, l))
    a('v_lshl_add_u32 v%d, v%d, 3, v%d' % (t, g, t))
    a('v_and_b32 v%d, 1, v%d' % (t2, g))
    a('v_lshl_add_u32 v%d, v%d, 2, v%d' % (t3, t2, t))
    a('v_xor_b32 v%d, 1, v%d' % (t2, t2))
    a('v_lshl_add_u32 v%d, v%d, 2, v%d' % (t, t2, t))
    a('v_and_b32 v%d, 3, v%d' % (t2, l))
    a('v_lshlrev_b32 v%d, 3, v%d' % (t2, t2))
    a('v_add_u32 v%d, s26, v%d' % (t2, t2))
    a('v_mul_u32_u24 v%d, 160, v%d' % (t3, t3))
    a('v_mul_u32_u24 v%d, 160, v%d' % (t, t))
    a('v_add_u32 v%d, v%d, v%d' % (vq, t3, t2))
    a('v_add_u32 v%d, v%d, v%d' % (vq+1, t, t2))
    vx = R.a(2)
    a('v_lshrrev_b32 v%d, 1, v%d' % (t, l15))
    a('v_xor_b32 v%d, v%d, v%d' % (t, t, g))
    a('v_lshlrev_b32 v%d, 7, v%d' % (t2, l15))
    a('v_add_u32 v%d, s26, v%d' % (t2, t2))
    a('v_lshl_add_u32 v%d, v%d, 4, v%d' % (vx, t, t2))
    a('v_xor_b32 v%d, 4, v%d' % (t, t))
    a('v_lshl_add_u32 v%d, v%d, 4, v%d' % (vx+1, t, t2))
    FW = [[R.a(4) for jt in range(5)] for b in range(2)]
    FG = [[R.a(4) for i in range(4)] for b in range(2)]
    acc = {(jt,i): R.a(4) for jt in range(5) for i in range(4)}
    for jt in range(5):
        for i in range(4):
            for r in range(4): a('v_mov_b32 v%d, 0' % (acc[jt,i]+r))
    hh = R.a(10)
    def treads(s, p):
        if 'b' in FL: return
        for i in range(4):
            a('ds_read_b128 %s, v%d offset:%d' % (vr(FG[p][i],4), vx+p, (s%2)*18432 + 10240 + i*2048))
        for jt in range(5):
            for q in range(2):
                a('ds_read_b64_tr_b16 %s, v%d offset:%d' % (vr(FW[p][jt]+2*q,2), vq+q, (s%2)*18432 + p*5120 + jt*32))
    def mm(s, p):
        if 'c' in FL: return
        a('s_cmp_eq_u32 s35, s36')
        a('s_cbranch_scc1 k5_sk%d_%d' % (s, p))
        for i in range(4):
            for jt in range(5):
                mfma16(a, acc[jt,i], FW[p][jt], FG[p][i], acc[jt,i], 'bf16')
        a.label('k5_sk%d_%d' % (s, p))
    a('s_waitcnt vmcnt(18)')
    treads(0, 0)
    for s in range(7):
        a('s_waitcnt lgkmcnt(0)')
        treads(s, 1)
        mm(s, 0)
        a('s_waitcnt lgkmcnt(0)')
        if s + 2 <= 6: loads(s+2)
        if s == 5:
            for jt in range(5):
                a('buffer_load_dwordx2 %s, v%d, s[20:23], s6 offen offset:%d' % (vr(hh+2*jt,2), vh, 32*jt))
        if s < 6:
            a('s_waitcnt vmcnt(%d)' % (18 if s <= 4 else 5))
            treads(s+1, 0)
        mm(s, 1)
        a('s_add_u32 s35, s35, 1')
        a('s_cmp_eq_u32 s35, 7')
        a('s_cselect_b32 s35, 0, s35')
    la = R.a(); lr = R.a(3)
    a('v_lshlrev_b32 v%d, 4, v%d' % (t, l))
    a('v_add_u32 v%d, s26, v%d' % (la, t))
    for d in range(1,4):
        a('s_sub_u32 s28, s3, %d' % d)
        a('s_and_b32 s28, s28, 3')
        a('s_mul_i32 s28, s28, 36864')
        a('v_add_u32 v%d, s28, v%d' % (lr+d-1, t))
    for i in range(1,4):
        for jt in range(5):
            a('ds_write_b128 v%d, %s offset:%d' % (la, vr(acc[jt,i],4), ((i-1)*5+jt)*1024))
    a('s_waitcnt lgkmcnt(0)')
    a('s_barrier')
    for d in range(1,4):
        for jt in range(5):
            a('ds_read_b128 %s, v%d offset:%d' % (vr(acc[jt,d],4), lr+d-1, ((d-1)*5+jt)*1024))
    for d in range(1,4):
        a('s_waitcnt lgkmcnt(%d)' % (5*(3-d)))
        for jt in range(5):
            for r in range(4):
                a('v_add_f32 v%d, v%d, v%d' % (acc[jt,0]+r, acc[jt,0]+r, acc[jt,d]+r))
    a('s_waitcnt vmcnt(0)')
    for jt in range(5):
        A = acc[jt,0]
        for h in range(2):
            a('v_cvt_pk_bf16_f32 v%d, v%d, v%d' % (t, A+2*h, A+2*h+1))
            a('v_lshlrev_b32 v%d, 16, v%d' % (A+2*h, t))
            a('v_and_b32 v%d, 0xffff0000, v%d' % (A+2*h+1, t))
            a('v_lshlrev_b32 v%d, 16, v%d' % (t, hh+2*jt+h))
            a('v_and_b32 v%d, 0xffff0000, v%d' % (t2, hh+2*jt+h))
            a('v_add_f32 v%d, v%d, v%d' % (A+2*h, A+2*h, t))
            a('v_add_f32 v%d, v%d, v%d' % (A+2*h+1, A+2*h+1, t2))
            a('v_cvt_pk_bf16_f32 v%d, v%d, v%d' % (hh+2*jt+h, A+2*h, A+2*h+1))
        a('buffer_store_dwordx2 %s, v%d, s[12:15], s6 offen offset:%d' % (vr(hh+2*jt,2), vh, 32*jt))
    kend(a, name)
    return name, R.hi, '; @launch kernel=k5_kernel grid=(256,1,1) block=(256,1,1) lds=147456'
```

```python
from common import *
import os
FL = os.environ.get('FL','')
MOD = (' nt' if 'N' in FL else '') + (' sc1' if 'S' in FL else '') + (' sc0' if 'T' in FL else '')

def gen_k4(a):
    name = 'k4_kernel'
    R = Regs(1)
    kstart(a, name, 216)
    ldptr(a, 8, 32); ldptr(a, 12, 40); ldptr(a, 16, 72)
    if 't' in FL:
        a('s_memtime s[40:41]'); a('s_memrealtime s[42:43]'); ldptr(a, 48, 64)
    l = R.a(); t = R.a(); t2 = R.a(); t3 = R.a()
    a('v_lshrrev_b32 v%d, 6, v0' % l)
    a('v_readfirstlane_b32 s3, v%d' % l)
    a('v_and_b32 v%d, 63, v0' % l)
    a('s_and_b32 s4, s2, 7')
    a('s_lshr_b32 s5, s2, 3')
    if 'm' not in FL:
        a('s_mul_i32 s4, s4, 27')
        a('s_add_u32 s4, s4, s5')
        a('s_cmp_ge_u32 s4, 108')
        a('s_cselect_b32 s6, 108, 0')
        a('s_cselect_b32 s7, 4, 0')
        a('s_sub_u32 s4, s4, s6')
        a('s_lshr_b32 s5, s4, 2')
        a('s_and_b32 s4, s4, 3')
        a('s_mul_i32 s32, s4, 5')
        a('s_lshr_b32 s32, s32, 1')
        a('s_add_u32 s32, s32, s5')
        a('s_mul_i32 s33, s32, 205')
        a('s_lshr_b32 s33, s33, 11')
        a('s_mul_i32 s33, s33, 10')
        a('s_sub_u32 s32, s32, s33')
        a('s_add_u32 s4, s4, s7')
    else:
        a('s_mov_b32 s32, 0')
    if 'z' in FL:
        a('s_mov_b32 s4, 0')
        a('s_mov_b32 s5, 0')
    a('s_lshr_b32 s6, s3, 1')
    a('s_and_b32 s7, s3, 1')
    vdx = R.a(4); vdw = R.a()
    a('s_lshl_b32 s24, s4, 8')
    a('s_lshl_b32 s25, s3, 5')
    a('s_add_u32 s24, s24, s25')
    a('v_lshrrev_b32 v%d, 3, v%d' % (t, l))
    a('v_add_u32 v%d, s24, v%d' % (t2, t))
    a('v_mul_u32_u24 v%d, 1280, v%d' % (t2, t2))
    a('v_lshrrev_b32 v%d, 4, v%d' % (t3, l))
    a('v_xor_b32 v%d, v%d, v%d' % (t3, t3, l))
    a('v_and_b32 v%d, 7, v%d' % (t3, t3))
    for i in range(4):
        if i & 1: a('v_xor_b32 v%d, 4, v%d' % (vdx+i, t3))
        else: a('v_mov_b32 v%d, v%d' % (vdx+i, t3))
        a('v_lshl_add_u32 v%d, v%d, 4, v%d' % (vdx+i, vdx+i, t2))
        if i: a('v_add_u32 v%d, %d, v%d' % (vdx+i, 8*i*1280, vdx+i))
    a('s_lshl_b32 s25, s3, 3')
    a('v_add_u32 v%d, s25, v%d' % (t2, t))
    a('v_mul_u32_u24 v%d, 3456, v%d' % (t2, t2))
    a('v_lshrrev_b32 v%d, 2, v%d' % (t3, l))
    a('v_and_b32 v%d, 4, v%d' % (t3, t3))
    a('v_xor_b32 v%d, v%d, v%d' % (t3, t3, l))
    a('v_and_b32 v%d, 7, v%d' % (t3, t3))
    a('v_lshl_add_u32 v%d, v%d, 4, v%d' % (vdw, t3, t2))
    a('s_lshl_b32 s25, s5, 7')
    a('v_add_u32 v%d, s25, v%d' % (vdw, vdw))
    a('s_lshl_b32 s26, s3, 12')
    a('s_lshl_b32 s27, s3, 10')
    a('s_waitcnt lgkmcnt(0)')
    mksrd(a, 20, GUB, GU_OFF, 16)
    mksrd(a, 16, XB, LN2_OFF)
    mksrd(a, 8, WGB); mksrd(a, 12, WGB)
    def dma(kt):
        if 'a' in FL: return
        sb = (kt % 3) * 49152
        a('s_lshl_b32 s28, s32, 7')
        a('s_mul_i32 s29, s32, 221184')
        a('s_add_u32 s32, s32, 1')
        a('s_cmp_eq_u32 s32, 10')
        a('s_cselect_b32 s32, 0, s32')
        for i in range(4):
            if 'x' in FL: break
            a('s_add_u32 m0, s26, %d' % (sb + i*1024))
            if 'r' in FL: a('buffer_load_dwordx4 v[%d:%d], v%d, s[16:19], s28 offen' % (100+4*i, 103+4*i, vdx+i))
            else: a('buffer_load_dwordx4 v%d, s[16:19], s28 offen lds' % (vdx+i) + MOD)
        if 'w' in FL: return
        a('s_add_u32 m0, s27, %d' % (sb + 32768))
        a('buffer_load_dwordx4 v%d, s[8:11], s29 offen lds' % vdw + MOD)
        a('s_add_u32 m0, s27, %d' % (sb + 40960))
        a('buffer_load_dwordx4 v%d, s[12:15], s29 offen lds' % vdw + MOD)
    dma(0); dma(1)
    vX = [R.a(4), R.a(4)]; vW = R.a(3)
    a('v_and_b32 v%d, 31, v%d' % (t, l))
    a('s_lshl_b32 s25, s6, 6')
    a('v_add_u32 v%d, s25, v%d' % (t, t))
    rowl = R.a()
    a('v_mov_b32 v%d, v%d' % (rowl, t))
    a('v_lshlrev_b32 v%d, 7, v%d' % (t, t))
    a('v_lshrrev_b32 v%d, 5, v%d' % (t2, l))
    a('v_bfe_u32 v%d, v%d, 1, 3' % (t3, l))
    a('v_xor_b32 v%d, v%d, v%d' % (t3, t3, t2))
    for ks in range(4):
        a('v_xor_b32 v%d, %d, v%d' % (vX[0]+ks, 2*ks, t3))
        a('v_lshl_add_u32 v%d, v%d, 4, v%d' % (vX[0]+ks, vX[0]+ks, t))
        a('v_add_u32 v%d, %d, v%d' % (vX[1]+ks, 98304, vX[0]+ks))
    a('v_bfe_u32 v%d, v%d, 2, 2' % (t, l))
    a('v_lshl_add_u32 v%d, v%d, 3, v%d' % (t3, t2, t))
    a('v_lshlrev_b32 v%d, 7, v%d' % (t3, t3))
    a('v_lshrrev_b32 v%d, 1, v%d' % (t, t))
    a('v_lshlrev_b32 v%d, 6, v%d' % (t, t))
    a('v_and_b32 v%d, 3, v%d' % (vW, l))
    a('v_lshlrev_b32 v%d, 3, v%d' % (vW, vW))
    a('v_and_b32 v%d, 16, v%d' % (vW+1, l))
    a('v_lshl_add_u32 v%d, v%d, 1, v%d' % (vW, vW+1, vW))
    a('s_lshl_b32 s25, s7, 6')
    a('v_add_u32 v%d, s25, v%d' % (vW, vW))
    a('v_xor_b32 v%d, v%d, v%d' % (vW, vW, t))
    a('v_add_u32 v%d, v%d, v%d' % (vW, vW, t3))
    a('v_add_u32 v%d, 32768, v%d' % (vW, vW))
    a('v_add_u32 v%d, 49152, v%d' % (vW+1, vW))
    a('v_add_u32 v%d, 98304, v%d' % (vW+2, vW))
    acc = {(rb,gu): R.a(16) for rb in range(2) for gu in range(2)}
    FX = {(ks,rb): R.a(4) for ks in range(4) for rb in range(2)}
    FW = {(ks,gu): R.a(4) for ks in range(4) for gu in range(2)}
    def reads(kt, ks):
        if 'b' in FL: return
        st = kt % 3
        for gu in range(2):
            for q in range(2):
                a('ds_read_b64_tr_b16 %s, v%d offset:%d' % (vr(FW[ks,gu]+2*q,2), vW+st, ks*2048+q*512+gu*8192))
        for rb in range(2):
            a('ds_read_b128 %s, v%d offset:%d' % (vr(FX[ks,rb],4), vX[st>>1]+ks, rb*4096 + (st&1)*49152))
    def mm(kt, ks):
        if 'c' in FL and kt+ks > 0: return
        for rb in range(2):
            for gu in range(2):
                c = '0' if (kt == 0 and ks == 0) else vr(acc[rb,gu],16)
                a('v_mfma_f32_32x32x16_bf16 %s, %s, %s, %s' % (vr(acc[rb,gu],16), vr(FW[ks,gu],4), vr(FX[ks,rb],4), c))
    for kt in range(10):
        if 'n' not in FL or kt == 9:
            a('s_waitcnt vmcnt(%d)' % (6 if kt < 9 else 0))
            a('s_barrier')
        reads(kt, 0); reads(kt, 1)
        if kt + 2 <= 9: dma(kt+2)
        a('s_waitcnt lgkmcnt(6)')
        reads(kt, 2)
        mm(kt, 0)
        a('s_waitcnt lgkmcnt(6)')
        reads(kt, 3)
        mm(kt, 1)
        a('s_waitcnt lgkmcnt(6)')
        mm(kt, 2)
        a('s_waitcnt lgkmcnt(0)')
        mm(kt, 3)
    vo = R.a(); vw_ = R.a(); vr_ = R.a()
    C1 = R.a(2); C2 = R.a(2); ONE = R.a(2)
    a('v_lshrrev_b32 v%d, 2, v%d' % (t, l))
    a('v_and_b32 v%d, 3, v%d' % (t2, l))
    a('s_lshl_b32 s25, s6, 6')
    a('v_add_u32 v%d, s25, v%d' % (t3, t))
    a('v_mul_u32_u24 v%d, 3456, v%d' % (vo, t3))
    a('v_lshl_add_u32 v%d, v%d, 4, v%d' % (vo, t2, vo))
    a('s_mul_i32 s25, s3, 5120')
    a('s_add_u32 s25, s25, 49152')
    a('v_mul_u32_u24 v%d, 80, v%d' % (vr_, t))
    a('v_lshl_add_u32 v%d, v%d, 4, v%d' % (vr_, t2, vr_))
    a('v_add_u32 v%d, s25, v%d' % (vr_, vr_))
    a('v_and_b32 v%d, 31, v%d' % (t, l))
    a('v_lshrrev_b32 v%d, 5, v%d' % (t2, l))
    a('v_mul_u32_u24 v%d, 80, v%d' % (vw_, t))
    a('v_lshl_add_u32 v%d, v%d, 3, v%d' % (vw_, t2, vw_))
    a('v_add_u32 v%d, s25, v%d' % (vw_, vw_))
    a('s_mul_i32 s24, s4, %d' % (256*3456))
    a('s_lshl_b32 s25, s5, 7')
    a('s_add_u32 s24, s24, s25')
    a('s_lshl_b32 s25, s7, 6')
    a('s_add_u32 s24, s24, s25')
    for j in range(1,4): a('s_add_u32 s%d, s24, %d' % (24+j, j*16*3456))
    c1 = -2*0.7978845608028654*math.log2(math.e)
    for k in range(2):
        a('v_mov_b32 v%d, %s' % (C1+k, f32(c1)))
        a('v_mov_b32 v%d, %s' % (C2+k, f32(c1*0.044715)))
        a('v_mov_b32 v%d, 1.0' % (ONE+k))
    T = [FX[ks,rb] for ks in range(4) for rb in range(2)]
    O = [FW[ks,gu_] for ks in range(4) for gu_ in range(2)]
    P2 = lambda r: vr(r,2)
    for rb in range(2):
        for qq in range(2):
            prs = range(4)
            def regs(pr):
                r0 = 8*qq + 2*pr
                tq = T[(qq*4+pr)]
                return acc[rb,0]+r0, acc[rb,1]+r0, tq, tq+2
            for pr in prs:
                g0, u0, X, E = regs(pr)
                a('v_cvt_pk_bf16_f32 v%d, v%d, v%d' % (X+1, g0, g0+1))
                a('v_cvt_pk_bf16_f32 v%d, v%d, v%d' % (u0+1, u0, u0+1))
                a('v_lshlrev_b32 v%d, 16, v%d' % (X, X+1))
                a('v_and_b32 v%d, 0xffff0000, v%d' % (X+1, X+1))
                a('v_pk_mul_f32 %s, %s, %s' % (P2(E), P2(X), P2(X)))
                a('v_pk_fma_f32 %s, %s, %s, %s' % (P2(E), P2(E), P2(C2), P2(C1)))
                a('v_pk_mul_f32 %s, %s, %s' % (P2(E), P2(E), P2(X)))
            for pr in prs:
                g0, u0, X, E = regs(pr)
                a('v_exp_f32 v%d, v%d' % (E, E))
                a('v_exp_f32 v%d, v%d' % (E+1, E+1))
                a('v_lshlrev_b32 v%d, 16, v%d' % (u0, u0+1))
                a('v_and_b32 v%d, 0xffff0000, v%d' % (u0+1, u0+1))
            for pr in prs:
                g0, u0, X, E = regs(pr)
                a('v_pk_add_f32 %s, %s, %s' % (P2(E), P2(E), P2(ONE)))
            for pr in prs:
                g0, u0, X, E = regs(pr)
                a('v_rcp_f32 v%d, v%d' % (E, E))
                a('v_rcp_f32 v%d, v%d' % (E+1, E+1))
            for pr in prs:
                g0, u0, X, E = regs(pr)
                o = O[rb*2+qq] + pr
                a('v_pk_mul_f32 %s, %s, %s' % (P2(X), P2(X), P2(E)))
                a('v_cvt_pk_bf16_f32 v%d, v%d, v%d' % (X+1, X, X+1))
                a('v_lshlrev_b32 v%d, 16, v%d' % (X, X+1))
                a('v_and_b32 v%d, 0xffff0000, v%d' % (X+1, X+1))
                a('v_pk_mul_f32 %s, %s, %s' % (P2(X), P2(X), P2(u0)))
                a('v_cvt_pk_bf16_f32 v%d, v%d, v%d' % (o, X, X+1))
            for hq in range(2):
                a('ds_write_b64 v%d, %s offset:%d' % (vw_, vr(O[rb*2+qq]+2*hq,2), rb*2560 + 16*(2*qq+hq)))
            if rb == 1 and qq == 0:
                a('s_waitcnt lgkmcnt(2)')
                for j in range(2):
                    a('buffer_store_dwordx4 %s, v%d, s[20:23], s%d offen' % (vr(O[4+j],4), vo, 24+j))
        for jj in range(2):
            j = 2*rb + jj
            a('ds_read_b128 %s, v%d offset:%d' % (vr(O[4+j],4), vr_, j*1280))
        if rb == 0: continue
    for j in range(2,4):
        a('s_waitcnt lgkmcnt(%d)' % (3-j))
        a('buffer_store_dwordx4 %s, v%d, s[20:23], s%d offen' % (vr(O[4+j],4), vo, 24+j))
    if 't' in FL:
        a('s_memtime s[44:45]'); a('s_memrealtime s[46:47]')
        a('s_waitcnt lgkmcnt(0)')
        mksrd(a, 48, 256)
        a('s_sub_u32 s44, s44, s40'); a('s_sub_u32 s46, s46, s42')
        a('s_lshl_b32 s40, s2, 3'); a('s_add_u32 s40, s40, s3')
        a('s_cmp_ge_u32 s40, 16'); a('s_cbranch_scc1 %s_end' % name)
        a('s_lshl_b32 s40, s40, 3')
        a('v_mov_b32 v2, s44'); a('v_mov_b32 v3, s46'); a('v_mov_b32 v1, 0')
        a('buffer_store_dwordx2 v[2:3], v1, s[48:51], s40 offen')
    kend(a, name)
    return name, R.hi, '; @launch kernel=k4_kernel grid=(216,1,1) block=(512,1,1) lds=147456'

def gen_k5(a):
    name = 'k5_kernel'
    R = Regs(1)
    kstart(a, name, 256)
    ldptr(a, 12, 56); ldptr(a, 16, 72)
    l = R.a(); l15 = R.a(); g = R.a(); t = R.a(); t2 = R.a(); t3 = R.a()
    a('v_lshrrev_b32 v%d, 6, v0' % l)
    a('v_readfirstlane_b32 s3, v%d' % l)
    a('v_and_b32 v%d, 63, v0' % l)
    a('v_and_b32 v%d, 15, v0' % l15)
    a('v_bfe_u32 v%d, v0, 4, 2' % g)
    a('s_and_b32 s4, s2, 7')
    a('s_lshl_b32 s4, s4, 2')
    a('s_bfe_u32 s5, s2, 0x20003')
    a('s_add_u32 s4, s4, s5')
    a('s_lshr_b32 s5, s2, 5')
    a('s_mul_i32 s6, s5, 160')
    vd = R.a(5)
    for i in range(5):
        a('v_add_u32 v%d, %d, v%d' % (t, 64*i, l))
        a('v_mul_u32_u24 v%d, 52429, v%d' % (t2, t))
        a('v_lshrrev_b32 v%d, 19, v%d' % (t2, t2))
        a('v_mul_u32_u24 v%d, 10, v%d' % (t3, t2))
        a('v_sub_u32 v%d, v%d, v%d' % (t, t, t3))
        a('v_lshrrev_b32 v%d, 1, v%d' % (t3, t2))
        a('v_and_b32 v%d, 4, v%d' % (t3, t3))
        a('v_xor_b32 v%d, v%d, v%d' % (t2, t2, t3))
        a('v_mul_u32_u24 v%d, 160, v%d' % (t2, t2))
        a('v_lshl_add_u32 v%d, v%d, 4, v%d' % (vd+i, t, t2))
    vg = R.a(8)
    a('v_lshrrev_b32 v%d, 3, v%d' % (t, l))
    a('v_lshrrev_b32 v%d, 4, v%d' % (t3, l))
    a('v_xor_b32 v%d, v%d, v%d' % (t3, t3, l))
    a('v_and_b32 v%d, 7, v%d' % (t3, t3))
    for j in range(8):
        a('s_add_u32 s24, s3, %d' % (j >> 1))
        a('s_and_b32 s24, s24, 3')
        a('s_lshl_b32 s24, s24, 4')
        a('s_add_u32 s24, s24, %d' % (8*(j&1)))
        a('v_add_u32 v%d, s24, v%d' % (t2, t))
        a('v_mul_u32_u24 v%d, 3456, v%d' % (t2, t2))
        if j & 1: a('v_xor_b32 v%d, 4, v%d' % (vg+j, t3))
        else: a('v_mov_b32 v%d, v%d' % (vg+j, t3))
        a('v_lshl_add_u32 v%d, v%d, 4, v%d' % (vg+j, vg+j, t2))
    a('s_mul_i32 s24, s4, %d' % (64*3456))
    a('s_mul_i32 s25, s3, 896')
    a('s_add_u32 s24, s24, s25')
    a('s_mul_i32 s25, s5, 1728')
    a('s_mul_i32 s26, s3, 448')
    a('s_add_u32 s25, s25, s26')
    a('s_mul_i32 s25, s25, 160')
    a('s_mul_i32 s26, s3, 36864')
    a('s_and_b32 s32, s4, 3')
    a('s_lshl_b32 s32, s32, 1')
    a('s_add_u32 s32, s32, s5')
    a('s_cmp_ge_u32 s32, 7')
    a('s_cselect_b32 s33, 7, 0')
    a('s_sub_u32 s32, s32, s33')
    if 'm' in FL: a('s_mov_b32 s32, 0')
    a('s_mov_b32 s35, s32')
    a('s_cmp_eq_u32 s3, 3')
    a('s_cselect_b32 s36, 6, 99')
    vh = R.a()
    a('s_lshl_b32 s27, s4, 6')
    a('s_lshl_b32 s28, s3, 4')
    a('s_add_u32 s27, s27, s28')
    a('v_add_u32 v%d, s27, v%d' % (t, l15))
    a('v_mul_u32_u24 v%d, 1280, v%d' % (t, t))
    a('v_lshl_add_u32 v%d, v%d, 3, v%d' % (vh, g, t))
    a('s_waitcnt lgkmcnt(0)')
    mksrd(a, 20, XB, H_OFF, 16)
    mksrd(a, 8, WDB, WDP_OFF, 16)
    mksrd(a, 16, GUB, GU_OFF)
    mksrd(a, 12, XB)
    def loads(s):
        if 'a' in FL: return
        a('s_mul_i32 s33, s32, 10240')
        a('s_add_u32 s33, s33, s25')
        a('s_add_u32 s37, s33, 5120')
        a('s_lshl_b32 s34, s32, 7')
        a('s_add_u32 s34, s34, s24')
        for j in range(8):
            if 'x' in FL: break
            a('s_add_u32 m0, s26, %d' % ((s % 2)*18432 + 10240 + j*1024))
            a('buffer_load_dwordx4 v%d, s[16:19], s34 offen lds' % (vg+j) + MOD)
        for i in range(10):
            if 'w' in FL: break
            a('s_add_u32 m0, s26, %d' % ((s % 2)*18432 + i*1024))
            a('buffer_load_dwordx4 v%d, s[8:11], s%d offen lds' % (vd+i%5, 33 if i < 5 else 37) + MOD)
        a('s_add_u32 s32, s32, 1')
        a('s_cmp_eq_u32 s32, 7')
        a('s_cselect_b32 s32, 0, s32')
    loads(0); loads(1)
    vq = R.a(2)
    a('v_bfe_u32 v%d, v%d, 2, 2' % (t, l))
    a('v_lshl_add_u32 v%d, v%d, 3, v%d' % (t, g, t))
    a('v_and_b32 v%d, 1, v%d' % (t2, g))
    a('v_lshl_add_u32 v%d, v%d, 2, v%d' % (t3, t2, t))
    a('v_xor_b32 v%d, 1, v%d' % (t2, t2))
    a('v_lshl_add_u32 v%d, v%d, 2, v%d' % (t, t2, t))
    a('v_and_b32 v%d, 3, v%d' % (t2, l))
    a('v_lshlrev_b32 v%d, 3, v%d' % (t2, t2))
    a('v_add_u32 v%d, s26, v%d' % (t2, t2))
    a('v_mul_u32_u24 v%d, 160, v%d' % (t3, t3))
    a('v_mul_u32_u24 v%d, 160, v%d' % (t, t))
    a('v_add_u32 v%d, v%d, v%d' % (vq, t3, t2))
    a('v_add_u32 v%d, v%d, v%d' % (vq+1, t, t2))
    vx = R.a(2)
    a('v_lshrrev_b32 v%d, 1, v%d' % (t, l15))
    a('v_xor_b32 v%d, v%d, v%d' % (t, t, g))
    a('v_lshlrev_b32 v%d, 7, v%d' % (t2, l15))
    a('v_add_u32 v%d, s26, v%d' % (t2, t2))
    a('v_lshl_add_u32 v%d, v%d, 4, v%d' % (vx, t, t2))
    a('v_xor_b32 v%d, 4, v%d' % (t, t))
    a('v_lshl_add_u32 v%d, v%d, 4, v%d' % (vx+1, t, t2))
    FW = [[R.a(4) for jt in range(5)] for b in range(2)]
    FG = [[R.a(4) for i in range(4)] for b in range(2)]
    acc = {(jt,i): R.a(4) for jt in range(5) for i in range(4)}
    for jt in range(5):
        for i in range(4):
            for r in range(4): a('v_mov_b32 v%d, 0' % (acc[jt,i]+r))
    hh = R.a(10)
    def treads(s, p):
        if 'b' in FL: return
        for i in range(4):
            a('ds_read_b128 %s, v%d offset:%d' % (vr(FG[p][i],4), vx+p, (s%2)*18432 + 10240 + i*2048))
        for jt in range(5):
            for q in range(2):
                a('ds_read_b64_tr_b16 %s, v%d offset:%d' % (vr(FW[p][jt]+2*q,2), vq+q, (s%2)*18432 + p*5120 + jt*32))
    def mm(s, p):
        if 'c' in FL: return
        a('s_cmp_eq_u32 s35, s36')
        a('s_cbranch_scc1 k5_sk%d_%d' % (s, p))
        for i in range(4):
            for jt in range(5):
                mfma16(a, acc[jt,i], FW[p][jt], FG[p][i], acc[jt,i], 'bf16')
        a.label('k5_sk%d_%d' % (s, p))
    a('s_waitcnt vmcnt(18)')
    treads(0, 0)
    for s in range(7):
        a('s_waitcnt lgkmcnt(0)')
        treads(s, 1)
        mm(s, 0)
        a('s_waitcnt lgkmcnt(0)')
        if s + 2 <= 6: loads(s+2)
        if s == 5:
            for jt in range(5):
                a('buffer_load_dwordx2 %s, v%d, s[20:23], s6 offen offset:%d' % (vr(hh+2*jt,2), vh, 32*jt))
        if s < 6:
            a('s_waitcnt vmcnt(%d)' % (18 if s <= 4 else 5))
            treads(s+1, 0)
        mm(s, 1)
        a('s_add_u32 s35, s35, 1')
        a('s_cmp_eq_u32 s35, 7')
        a('s_cselect_b32 s35, 0, s35')
    la = R.a(); lr = R.a(3)
    a('v_lshlrev_b32 v%d, 4, v%d' % (t, l))
    a('v_add_u32 v%d, s26, v%d' % (la, t))
    for d in range(1,4):
        a('s_sub_u32 s28, s3, %d' % d)
        a('s_and_b32 s28, s28, 3')
        a('s_mul_i32 s28, s28, 36864')
        a('v_add_u32 v%d, s28, v%d' % (lr+d-1, t))
    for i in range(1,4):
        for jt in range(5):
            a('ds_write_b128 v%d, %s offset:%d' % (la, vr(acc[jt,i],4), ((i-1)*5+jt)*1024))
    a('s_waitcnt lgkmcnt(0)')
    a('s_barrier')
    for d in range(1,4):
        for jt in range(5):
            a('ds_read_b128 %s, v%d offset:%d' % (vr(acc[jt,d],4), lr+d-1, ((d-1)*5+jt)*1024))
    for d in range(1,4):
        a('s_waitcnt lgkmcnt(%d)' % (5*(3-d)))
        for jt in range(5):
            for r in range(4):
                a('v_add_f32 v%d, v%d, v%d' % (acc[jt,0]+r, acc[jt,0]+r, acc[jt,d]+r))
    a('s_waitcnt vmcnt(0)')
    for jt in range(5):
        A = acc[jt,0]
        for h in range(2):
            a('v_cvt_pk_bf16_f32 v%d, v%d, v%d' % (t, A+2*h, A+2*h+1))
            a('v_lshlrev_b32 v%d, 16, v%d' % (A+2*h, t))
            a('v_and_b32 v%d, 0xffff0000, v%d' % (A+2*h+1, t))
            a('v_lshlrev_b32 v%d, 16, v%d' % (t, hh+2*jt+h))
            a('v_and_b32 v%d, 0xffff0000, v%d' % (t2, hh+2*jt+h))
            a('v_add_f32 v%d, v%d, v%d' % (A+2*h, A+2*h, t))
            a('v_add_f32 v%d, v%d, v%d' % (A+2*h+1, A+2*h+1, t2))
            a('v_cvt_pk_bf16_f32 v%d, v%d, v%d' % (hh+2*jt+h, A+2*h, A+2*h+1))
        a('buffer_store_dwordx2 %s, v%d, s[12:15], s6 offen offset:%d' % (vr(hh+2*jt,2), vh, 32*jt))
    kend(a, name)
    return name, R.hi, '; @launch kernel=k5_kernel grid=(256,1,1) block=(256,1,1) lds=147456'
```

```python
from asmlib import *
import math
Z1_OFF=0; Z2_OFF=0x280000; TA_OFF=0x500000; TCOLS=324; WMAX_OFF=0x7A0000
H_OFF=0x800000; LN2_OFF=0xA80000; GU_OFF=0xD00000
WDP_OFF=0x1400000
SYNC_OFF=0x7B0000
ZB=320*8192; XB=2048*1280; WB=2048*642; GUB=2048*3456; WGB=640*3456; WDB=1728*1280

def kstart(a, name, nwg):
    a.hist = []
    a.raw('.globl %s\n.p2align 8\n.type %s,@function' % (name, name))
    a.label(name)
    a('s_cmp_ge_u32 s2, %d' % nwg)
    a('s_cbranch_scc1 %s_end' % name)
def kend(a, name):
    a.label(name + '_end')
    a('s_endpgm')
def ldptr(a, s, koff):
    a('s_load_dwordx2 %s, s[0:1], %d' % (sr(s,2), koff))
def mksrd(a, s, nbytes, add=0, src=None):
    b = s if src is None else src
    if add:
        a('s_add_u32 s%d, s%d, 0x%x' % (s, b, add))
        a('s_addc_u32 s%d, s%d, 0' % (s+1, b+1))
    elif src is not None:
        a('s_mov_b32 s%d, s%d' % (s, b)); a('s_mov_b32 s%d, s%d' % (s+1, b+1))
    a('s_mov_b32 s%d, 0x%x' % (s+2, nbytes))
    a('s_mov_b32 s%d, 0x00020000' % (s+3))

def cs(a, vp, N, vc, vs, tmp=None):
    t = vs if tmp is None else tmp
    a('v_cvt_f32_u32 v%d, v%d' % (t, vp))
    a('v_mul_f32 v%d, %s, v%d' % (t, f32(1.0/N), t))
    a('v_cos_f32 v%d, v%d' % (vc, t))
    a('v_sin_f32 v%d, v%d' % (vs, t))

def wave_reduce(a, v, t, op='v_add_f32'):
    for m in ('quad_perm:[1,0,3,2]','quad_perm:[2,3,0,1]','row_half_mirror','row_mirror'):
        a('%s_dpp v%d, v%d, v%d %s row_mask:0xf bank_mask:0xf' % (op, v, v, v, m))
    for sw in ('v_permlane16_swap_b32','v_permlane32_swap_b32'):
        a('v_mov_b32 v%d, v%d' % (t, v))
        a('%s v%d, v%d' % (sw, v, t))
        a('%s v%d, v%d, v%d' % (op, v, v, t))

def bfround(a, v):
    a('v_cvt_pk_bf16_f32 v%d, v%d, v%d' % (v, v, v))
    a('v_lshlrev_b32 v%d, 16, v%d' % (v, v))

def layernorm(a, R, xf, outp):
    mk = R.mark()
    s = R.a(); t = R.a(); m = R.a(); q = R.a(); e = R.a(); q2 = R.a(); e2 = R.a()
    a('v_add_f32 v%d, v%d, v%d' % (s, xf, xf+1))
    for i in range(2,10): a('v_add_f32 v%d, v%d, v%d' % (s, s, xf+i))
    wave_reduce(a, s, t)
    a('v_mul_f32 v%d, %s, v%d' % (m, f32(1.0/640), s))
    a('v_sub_f32 v%d, v%d, v%d' % (t, xf, m))
    a('v_mul_f32 v%d, v%d, v%d' % (s, t, t))
    for i in range(1,10):
        a('v_sub_f32 v%d, v%d, v%d' % (t, xf+i, m))
        a('v_fmac_f32 v%d, v%d, v%d' % (s, t, t))
    wave_reduce(a, s, t)
    a('v_mul_f32 v%d, %s, v%d' % (s, f32(1.0/640), s))
    bfround(a, s); bfround(a, m)
    a('v_add_f32 v%d, %s, v%d' % (s, f32(1e-5), s))
    bfround(a, s)
    a('v_sqrt_f32 v%d, v%d' % (s, s))
    bfround(a, s)
    a('v_rcp_f32 v%d, v%d' % (t, s))
    for i in range(5):
        x0 = xf+2*i; x1 = x0+1
        a('v_sub_f32 v%d, v%d, v%d' % (x0, x0, m))
        a('v_sub_f32 v%d, v%d, v%d' % (x1, x1, m))
        a('v_cvt_pk_bf16_f32 v%d, v%d, v%d' % (x1, x0, x1))
        a('v_lshlrev_b32 v%d, 16, v%d' % (x0, x1))
        a('v_and_b32 v%d, 0xffff0000, v%d' % (x1, x1))
        a('v_mul_f32 v%d, v%d, v%d' % (q, x0, t))
        a('v_mul_f32 v%d, v%d, v%d' % (q2, x1, t))
        a('v_fma_f32 v%d, -v%d, v%d, v%d' % (e, q, s, x0))
        a('v_fma_f32 v%d, -v%d, v%d, v%d' % (e2, q2, s, x1))
        a('v_fmac_f32 v%d, v%d, v%d' % (q, e, t))
        a('v_fmac_f32 v%d, v%d, v%d' % (q2, e2, t))
        a('v_cvt_pk_bf16_f32 v%d, v%d, v%d' % (outp+i, q, q2))
    R.release(mk)

def mfma16(a, d, A, B, c, ty='f16'):
    a('v_mfma_f32_16x16x32_%s %s, %s, %s, %s' % (ty, vr(d,4), vr(A,4), vr(B,4), '0' if c is None else vr(c,4)))

def cmul_tw(a, dr, di, tc, ts, outr, outi, sign):
    a('v_mul_f32 v%d, v%d, v%d' % (outr, dr, tc))
    a('v_mul_f32 v%d, v%d, v%d' % (outi, di, tc))
    if sign < 0:
        a('v_fmac_f32 v%d, v%d, v%d' % (outr, di, ts))
        a('v_fma_f32 v%d, -v%d, v%d, v%d' % (outi, dr, ts, outi))
    else:
        a('v_fma_f32 v%d, -v%d, v%d, v%d' % (outr, di, ts, outr))
        a('v_fmac_f32 v%d, v%d, v%d' % (outi, dr, ts))

def load_wmax_ef(a, R, srd, lane, out):
    mk = R.mark()
    d = R.a(4); t = R.a()
    a('v_lshlrev_b32 v%d, 4, v%d' % (t, lane))
    a('buffer_load_dwordx4 %s, v%d, %s, 0 offen' % (vr(d,4), t, sr(srd,4)))
    return (d, t, mk)
def finish_wmax_ef(a, R, st, out):
    d, t, mk = st
    a('v_max_u32 v%d, v%d, v%d' % (d, d, d+1))
    a('v_max3_u32 v%d, v%d, v%d, v%d' % (out, d, d+2, d+3))
    wave_reduce(a, out, t, 'v_max_u32')
    a('v_lshrrev_b32 v%d, 7, v%d' % (out, out))
    a('v_max_u32 v%d, 8, v%d' % (out, out))
    a('v_min_u32 v%d, 0xfa, v%d' % (out, out))

def kdesc(name, vgpr, sgpr=96):
    v = (vgpr + 7)//8*8
    return '''.p2align 6
.amdhsa_kernel %s
  .amdhsa_next_free_vgpr %d
  .amdhsa_next_free_sgpr %d
  .amdhsa_accum_offset %d
  .amdhsa_group_segment_fixed_size 0
  .amdhsa_kernarg_size 80
  .amdhsa_user_sgpr_count 2
  .amdhsa_user_sgpr_kernarg_segment_ptr 1
  .amdhsa_system_sgpr_workgroup_id_x 1
.end_amdhsa_kernel
''' % (name, v, sgpr, v)

import os
STAMP = 'P' in os.environ.get('FL','')
class Stamper:
    def __init__(self, a, wgsel=0):
        self.a = a; self.n = 0; self.wg = wgsel
        if STAMP:
            a('s_load_dwordx2 s[88:89], s[0:1], 64')
    def __call__(self):
        if not STAMP: return
        self.a('s_memtime s[%d:%d]' % (60+2*self.n, 61+2*self.n)); self.n += 1
    def dump(self, wave_sreg):
        if not STAMP: return
        a = self.a
        self()
        a('s_waitcnt lgkmcnt(0)')
        lab = 'stamp_skip_%d' % len(a.lines)
        a('s_cmp_lg_u32 s2, %d' % self.wg)
        a('s_cbranch_scc1 %s' % lab)
        a('s_mov_b32 s90, 256'); a('s_mov_b32 s91, 0x00020000')
        a('s_lshl_b32 s92, s%d, 5' % wave_sreg)
        a('s_mov_b64 exec, 1')
        a('v_mov_b32 v1, 0')
        for i in range(self.n):
            a('s_sub_u32 s93, s%d, s60' % (60+2*i))
            a('v_mov_b32 v2, s93')
            a('buffer_store_dword v2, v1, s[88:91], s92 offen offset:%d' % (4*i))
        a.label(lab)

def fz_dmaw(a, kt):
    sb = (kt % 3) * 49152
    a('s_mul_i32 s63, s50, 221184')
    a('s_add_u32 s50, s50, 1')
    a('s_cmp_eq_u32 s50, 10')
    a('s_cselect_b32 s50, 0, s50')
    a('s_add_u32 m0, s27, %d' % (sb + 32768))
    a('buffer_load_dwordx4 v204, s[40:43], s63 offen lds')
    a('s_add_u32 m0, s27, %d' % (sb + 40960))
    a('buffer_load_dwordx4 v204, s[44:47], s63 offen lds')

def fz_arrive(a, tag, off):
    a('s_cmp_lg_u32 s3, 0')
    a('s_cbranch_scc1 %s_na' % tag)
    a('s_mov_b64 exec, 1')
    a('v_mov_b32 v205, 1')
    a('buffer_atomic_add v205, off, s[56:59], s55 offset:%d' % off)
    a('s_mov_b64 exec, -1')
    a.label('%s_na' % tag)

def fz_wait(a, tag, off, target, pw=0, other=None):
    a('s_mov_b32 s62, 200000')
    a('s_cmp_lg_u32 s3, %d' % pw)
    a('s_cbranch_scc1 %s_oth' % tag)
    a('s_mov_b64 exec, 1')
    a.label('%s_poll' % tag)
    a('v_mov_b32 v205, 0')
    a('buffer_atomic_add v205, off, s[56:59], s55 offset:%d sc0' % off)
    a('s_waitcnt vmcnt(0)')
    a('v_readfirstlane_b32 s61, v205')
    a('s_cmp_ge_u32 s61, %d' % target)
    a('s_cbranch_scc1 %s_pd' % tag)
    if int(os.environ.get('PSL','6')): a('s_sleep %d' % int(os.environ.get('PSL','6')))
    a('s_sub_u32 s62, s62, 1')
    a('s_cmp_lg_u32 s62, 0')
    a('s_cbranch_scc1 %s_poll' % tag)
    a.label('%s_pd' % tag)
    a('s_mov_b64 exec, -1')
    if other: a('s_branch %s_done' % tag)
    a.label('%s_oth' % tag)
    if other:
        other()
        a.label('%s_done' % tag)
    a('s_barrier')

def fz_pfw(a):
    a('s_mul_i32 s63, s94, 221184')
    a('s_add_u32 s94, s94, 1')
    a('s_cmp_eq_u32 s94, 10')
    a('s_cselect_b32 s94, 0, s94')
    a('buffer_load_dwordx4 v[208:211], v204, s[40:43], s63 offen')
    a('buffer_load_dwordx4 v[212:215], v204, s[44:47], s63 offen')

FZT = 'Q' in os.environ.get('FL','')
_fzn = [0]
def fz_stamp(a):
    if not FZT: return
    if _fzn[0] >= 12: return
    a('s_memtime s[%d:%d]' % (64+2*_fzn[0], 65+2*_fzn[0])); _fzn[0] += 1
def fz_dump(a):
    if not FZT: return
    fz_stamp(a)
    a('s_load_dwordx2 s[88:89], s[0:1], 64')
    a('s_waitcnt lgkmcnt(0)')
    a('s_cmp_lg_u32 s52, 3'); a('s_cbranch_scc1 fzd_skip')
    a('s_cmp_lg_u32 s3, 0'); a('s_cbranch_scc1 fzd_skip')
    if 'A' in os.environ.get('FL',''):
        a('s_mov_b32 s90, 256'); a('s_mov_b32 s91, 0x00020000')
        a('s_mov_b64 exec, 1')
        a('v_mov_b32 v1, 0')
        a('s_lshl_b32 s92, s53, 2')
        a('s_sub_u32 s93, s76, s70'); a('v_mov_b32 v2, s93')
        a('buffer_store_dword v2, v1, s[88:91], s92 offen')
        a('s_sub_u32 s93, s72, s70'); a('v_mov_b32 v2, s93')
        a('buffer_store_dword v2, v1, s[88:91], s92 offen offset:128')
        a('s_branch fzd_skip')
    a('s_mov_b32 s92, 0')
    a('s_cmp_eq_u32 s53, 0'); a('s_cbranch_scc1 fzd_go')
    a('s_mov_b32 s92, 64')
    a('s_cmp_eq_u32 s53, 5'); a('s_cbranch_scc1 fzd_go')
    a('s_mov_b32 s92, 128')
    a('s_cmp_eq_u32 s53, 26'); a('s_cbranch_scc1 fzd_go')
    a('s_mov_b32 s92, 192')
    a('s_cmp_eq_u32 s53, 31'); a('s_cbranch_scc1 fzd_go')
    a('s_branch fzd_skip')
    a.label('fzd_go')
    a('s_mov_b32 s90, 256'); a('s_mov_b32 s91, 0x00020000')
    a('s_mov_b64 exec, 1')
    a('v_mov_b32 v1, 0')
    for i in range(_fzn[0]):
        a('s_sub_u32 s93, s%d, s64' % (64+2*i))
        a('v_mov_b32 v2, s93')
        a('buffer_store_dword v2, v1, s[88:91], s92 offen offset:%d' % (4*i))
    a.label('fzd_skip')

def tab_base(a, s, name, bias=4096):
    lab = 'pc_%s_%d' % (name, len(a.lines))
    a('s_getpc_b64 s[%d:%d]' % (s, s+1))
    a.raw(lab + ':')
    a('s_sub_u32 s%d, s%d, %s-%s-%d' % (s, s, lab, name, bias))
    a('s_subb_u32 s%d, s%d, 0' % (s+1, s+1))
def tab_load(a, s, va, vb, dsts):
    for j, d in enumerate(dsts):
        v = va if j < 8 else vb
        off = (j % 8)*1024 - 4096
        a('global_load_dwordx4 %s, v%d, s[%d:%d] offset:%d' % (vr(d,4), v, s, s+1, off))
```

```python
from common import *

def row_setup(a, R):
    lane = R.a(); l15 = R.a(); g = R.a(); xo = R.a()
    a('v_lshrrev_b32 v%d, 6, v0' % lane)
    a('v_readfirstlane_b32 s3, v%d' % lane)
    a('v_and_b32 v%d, 63, v0' % lane)
    a('v_and_b32 v%d, 15, v0' % l15)
    a('v_bfe_u32 v%d, v0, 4, 2' % g)
    a('v_mul_u32_u24 v%d, 320, v%d' % (xo, g))
    a('v_lshl_add_u32 v%d, v%d, 2, v%d' % (xo, l15, xo))
    a('s_lshr_b32 s22, s2, 5')
    a('s_and_b32 s23, s2, 31')
    a('s_lshl_b32 s20, s22, 3')
    a('s_add_u32 s20, s20, s3')
    a('s_lshl_b32 s20, s20, 5')
    a('s_add_u32 s20, s20, s23')
    a('s_mul_i32 s20, s20, 1280')
    a('s_lshl_b32 s21, s23, 8')
    a('s_lshl_b32 s22, s22, 5')
    a('s_add_u32 s21, s21, s22')
    a('s_mul_i32 s24, s3, 1280')
    return lane, l15, g, xo

def gen_k1(a):
    name = 'k1_kernel'
    R = Regs(1)
    kstart(a, name, 256)
    ST = Stamper(a, 40); ST()
    ldptr(a, 4, 0); ldptr(a, 8, 8); ldptr(a, 12, 16); ldptr(a, 16, 72)
    lane, l15, g, xo = row_setup(a, R)
    tva = R.a(); tvb = R.a()
    a('v_lshlrev_b32 v%d, 4, v%d' % (tva, lane))
    a('v_add_u32 v%d, 8192, v%d' % (tvb, tva))
    tab_base(a, 54, 'ctab1')
    a('s_waitcnt lgkmcnt(0)')
    ST()
    mksrd(a, 28, TCOLS*8192, TA_OFF, 16)
    mksrd(a, 32, 1024, WMAX_OFF, 16)
    mksrd(a, 4, XB); mksrd(a, 8, WB); mksrd(a, 12, WB); mksrd(a, 16, ZB)
    xd = R.a(5)
    for i in range(5):
        a('buffer_load_dword v%d, v%d, s[4:7], s20 offen offset:%d' % (xd+i, xo, 64*i))
    B0 = {}; B1 = {}
    for cb in range(2):
        for c in range(2):
            B0[cb,c] = R.a(4)
    b1 = R.a(8); Are = R.a(4); Aim = R.a(4)
    assert Are == b1 + 8
    for cb in range(2):
        for c in range(2): B1[cb,c] = b1 + 4*cb + 2*c
    twc = R.a(8); tws = R.a(8)
    A1 = R.a(4); A0 = R.a(4)
    tab_load(a, 54, tva, tvb, [B0[0,0], B0[0,1], B0[1,0], B0[1,1], b1, b1+4, Are, Aim, twc, twc+4, tws, tws+4])
    wr = R.a(8,4); wi = R.a(8,4); wdst = R.a(); tt = R.a(); wcol = R.a()
    a('v_mov_b32 v%d, 0' % wdst)
    a('s_mov_b32 s48, 0')
    a('s_and_b32 s25, s3, 3')
    a('s_cmp_eq_u32 s25, 3')
    a('s_cbranch_scc1 k1_now1')
    a('v_and_b32 v%d, 255, v0' % tt)
    a('v_min_u32 v%d, 161, v%d' % (tt, tt))
    a('s_and_b32 s26, s2, 63')
    a('s_lshr_b32 s27, s2, 6')
    a('s_lshl_b32 s36, s27, 8')
    a('s_add_u32 s36, s36, s26')
    a('s_cmp_ge_u32 s3, 4')
    a('s_cselect_b32 s37, 1, 0')
    for idx in range(8):
        a('s_add_u32 s38, s36, %d' % (1024*(idx>>2) + 64*(idx&3)))
        a('s_sub_u32 s39, 2048, s38')
        a('s_and_b32 s39, s39, 2047')
        a('s_cmp_eq_u32 s37, 1')
        a('s_cselect_b32 s38, s39, s38')
        a('s_mul_i32 s%d, s38, 642' % (40+idx))
    a('s_lshr_b32 s38, s26, 4')
    a('s_lshl_b32 s38, s38, 6')
    a('s_lshl_b32 s39, s27, 4')
    a('s_add_u32 s38, s38, s39')
    a('s_and_b32 s39, s26, 15')
    a('s_add_u32 s38, s38, s39')
    a('s_lshl_b32 s48, s38, 5')
    a('s_cmp_eq_u32 s37, 1')
    a('s_cselect_b32 s38, 320, 0')
    a('s_cselect_b32 s39, -1, 1')
    a('s_cselect_b32 s49, 0, 320')
    a('s_cselect_b32 s50, 162, 0')
    a('s_sub_u32 s51, 323, s50')
    a('v_mul_lo_u32 v%d, v%d, s39' % (wcol, tt))
    a('v_add_u32 v%d, s38, v%d' % (wcol, wcol))
    a('v_add_u32 v%d, s50, v%d' % (wdst, tt))
    a('v_cmp_eq_u32 vcc, 161, v%d' % tt)
    a('v_mov_b32 v%d, s49' % tt)
    a('v_cndmask_b32 v%d, v%d, v%d, vcc' % (wcol, wcol, tt))
    a('v_mov_b32 v%d, s51' % tt)
    a('v_cndmask_b32 v%d, v%d, v%d, vcc' % (wdst, wdst, tt))
    a('v_lshlrev_b32 v%d, 1, v%d' % (wcol, wcol))
    a('v_lshlrev_b32 v%d, 13, v%d' % (wdst, wdst))
    for idx in range(8):
        a('buffer_load_ushort v%d, v%d, s[8:11], s%d offen' % (wr+idx, wcol, 40+idx))
        a('buffer_load_ushort v%d, v%d, s[12:15], s%d offen' % (wi+idx, wcol, 40+idx))
    a.label('k1_now1')
    p = R.a(); k1 = R.a(); n1 = R.a(); c0 = R.a(); s0 = R.a(); c1 = R.a(); s1 = R.a()
    for i in range(1,4): a('v_mov_b32 v%d, 0' % (A1+i))
    xf = R.a(10); up = R.a(5)
    ST()
    a('s_cmp_eq_u32 s25, 3')
    a('s_cbranch_scc1 k1_w0')
    a('s_waitcnt vmcnt(28)')
    a('s_branch k1_w1')
    a.label('k1_w0')
    a('s_waitcnt vmcnt(12)')
    a.label('k1_w1')
    ST()
    for i in range(5):
        a('v_lshlrev_b32 v%d, 16, v%d' % (xf+2*i, xd+i))
        a('v_and_b32 v%d, 0xffff0000, v%d' % (xf+2*i+1, xd+i))
    layernorm(a, R, xf, up)
    for i in range(5):
        a('v_lshlrev_b32 v%d, 16, v%d' % (c0, up+i))
        a('v_and_b32 v%d, 0xffff0000, v%d' % (s0, up+i))
        a('v_cvt_pk_f16_f32 v%d, v%d, v%d' % (A0+i if i < 4 else A1, c0, s0))
    D = {}
    a('s_cmp_eq_u32 s25, 3')
    a('s_cbranch_scc1 k1_w2')
    a('s_waitcnt vmcnt(16)')
    a('s_branch k1_w3')
    a.label('k1_w2')
    a('s_waitcnt vmcnt(0)')
    a.label('k1_w3')
    for cb in range(2):
        for c in range(2):
            D[cb,c] = R.a(4)
            mfma16(a, D[cb,c], A0, B0[cb,c], None)
    for cb in range(2):
        for c in range(2):
            mfma16(a, D[cb,c], A1, B1[cb,c], D[cb,c])
    B2 = [R.a(4), R.a(4)]
    tr_ = R.a(4); ti_ = R.a(4)
    for cb in range(2):
        for r in range(4):
            cmul_tw(a, D[cb,0]+r, D[cb,1]+r, twc+4*cb+r, tws+4*cb+r, tr_+r, ti_+r, -1)
        a('v_cvt_pk_f16_f32 v%d, v%d, v%d' % (B2[cb], tr_, tr_+1))
        a('v_cvt_pk_f16_f32 v%d, v%d, v%d' % (B2[cb]+1, tr_+2, tr_+3))
        a('v_cvt_pk_f16_f32 v%d, v%d, v%d' % (B2[cb]+2, ti_, ti_+1))
        a('v_cvt_pk_f16_f32 v%d, v%d, v%d' % (B2[cb]+3, ti_+2, ti_+3))
    for cb in range(2):
        mfma16(a, D[cb,0], Are, B2[cb], None)
        mfma16(a, D[cb,1], Aim, B2[cb], None)
    la = R.a()
    a('v_add_u32 v%d, s24, v%d' % (la, xo))
    for cb in range(2):
        for r in range(4):
            a('v_cvt_pk_f16_f32 v%d, v%d, v%d' % (D[cb,0]+r, D[cb,0]+r, D[cb,1]+r))
    for r in range(4):
        a('ds_write_b32 v%d, v%d offset:%d' % (la, D[0,0]+r, 80*r))
    a('s_mov_b32 s52, 0x000f000f')
    a('s_mov_b32 exec_lo, s52')
    a('s_mov_b32 exec_hi, s52')
    for r in range(4):
        a('ds_write_b32 v%d, v%d offset:%d' % (la, D[1,0]+r, 80*r+64))
    a('s_mov_b64 exec, -1')
    ST()
    mx = R.a(); t2 = R.a()
    a('v_mov_b32 v%d, 0' % mx)
    a('s_cmp_eq_u32 s25, 3')
    a('s_cbranch_scc1 k1_now2')
    a('s_waitcnt vmcnt(0)')
    for idx in range(8):
        a('v_lshl_or_b32 v%d, v%d, 16, v%d' % (wr+idx, wi+idx, wr+idx))
    a('buffer_store_dwordx4 %s, v%d, s[28:31], s48 offen' % (vr(wr,4), wdst))
    a('buffer_store_dwordx4 %s, v%d, s[28:31], s48 offen offset:16' % (vr(wr+4,4), wdst))
    for idx in range(8):
        a('v_and_b32 v%d, 0x7fff7fff, v%d' % (t2, wr+idx))
        a('v_pk_max_u16 v%d, v%d, v%d' % (mx, mx, t2))
    a('v_lshrrev_b32 v%d, 16, v%d' % (t2, mx))
    a('v_and_b32 v%d, 0xffff, v%d' % (mx, mx))
    a('v_max_u32 v%d, v%d, v%d' % (mx, mx, t2))
    wave_reduce(a, mx, t2, 'v_max_u32')
    a.label('k1_now2')
    a('s_lshl_b32 s26, s3, 2')
    a('s_add_u32 s26, s26, 10240')
    a('v_mov_b32 v%d, s26' % t2)
    a('ds_write_b32 v%d, v%d' % (t2, mx))
    a('s_waitcnt lgkmcnt(0)')
    ST()
    a('s_barrier')
    ST()
    a('s_cmp_ge_u32 s3, 5')
    a('s_cbranch_scc1 k1_nost')
    o = R.a(8,4)
    a('v_lshlrev_b32 v%d, 2, v0' % la)
    for q in range(4):
        a('ds_read2st64_b32 %s, v%d offset0:%d offset1:%d' % (vr(o+2*q,2), la, 10*q, 10*q+5))
    a('v_lshlrev_b32 v%d, 13, v0' % t2)
    a('s_waitcnt lgkmcnt(0)')
    a('buffer_store_dwordx4 %s, v%d, s[16:19], s21 offen' % (vr(o,4), t2))
    a('buffer_store_dwordx4 %s, v%d, s[16:19], s21 offen offset:16' % (vr(o+4,4), t2))
    if STAMP: a('s_waitcnt vmcnt(0)')
    ST.dump(3)
    a('s_endpgm')
    a.label('k1_nost')
    a('s_cmp_lg_u32 s3, 7')
    a('s_cbranch_scc1 %s_end' % name)
    a('v_mov_b32 v%d, 10240' % la)
    a('ds_read_b128 %s, v%d' % (vr(o,4), la))
    a('ds_read_b128 %s, v%d offset:16' % (vr(o+4,4), la))
    a('s_lshl_b32 s26, s2, 2')
    a('v_mov_b32 v%d, 0' % t2)
    a('s_waitcnt lgkmcnt(0)')
    a('v_max3_u32 v%d, v%d, v%d, v%d' % (mx, o, o+1, o+2))
    a('v_max3_u32 v%d, v%d, v%d, v%d' % (mx, mx, o+3, o+4))
    a('v_max3_u32 v%d, v%d, v%d, v%d' % (mx, mx, o+5, o+6))
    a('v_max_u32 v%d, v%d, v%d' % (mx, mx, o+7))
    a('s_mov_b64 exec, 1')
    a('buffer_store_dword v%d, v%d, s[32:35], s26 offen' % (mx, t2))
    kend(a, name)
    return name, R.hi, '; @launch kernel=k1_kernel grid=(256,1,1) block=(512,1,1) lds=10496'

def gen_k3(a, fz=False):
    name = 'k3_kernel'
    R = Regs(1)
    kstart(a, name, 256)
    if fz:
        fz_stamp(a)
        a('s_getreg_b32 s52, hwreg(HW_REG_XCC_ID)')
        a('s_and_b32 s52, s52, 7')
        a('s_lshr_b32 s53, s2, 3')
        a('s_mov_b32 s54, 0')
        a('s_lshl_b32 s55, s52, 8')
        a.label('k3_restart')
        ldptr(a, 40, 32); ldptr(a, 44, 40); ldptr(a, 48, 72)
        a('s_lshl_b32 s2, s52, 5')
        a('s_add_u32 s2, s2, s53')
    ST = Stamper(a, 40); ST()
    if fz and 'R' in os.environ.get('FL',''): ST = lambda: fz_stamp(a)
    ldptr(a, 4, 0); ldptr(a, 16, 72)
    lane, l15, g, xo = row_setup(a, R)
    tva = R.a(); tvb = R.a()
    a('v_lshlrev_b32 v%d, 4, v%d' % (tva, lane))
    a('v_add_u32 v%d, 8192, v%d' % (tvb, tva))
    tab_base(a, 14, 'ctab3')
    if fz:
        vdw = 204; ta = 205; tb = 206; vold = 207
        a('s_lshl_b32 s25, s3, 3')
        a('v_lshrrev_b32 v%d, 3, v%d' % (ta, lane))
        a('v_add_u32 v%d, s25, v%d' % (ta, ta))
        a('v_mul_u32_u24 v%d, 3456, v%d' % (ta, ta))
        a('v_lshrrev_b32 v%d, 2, v%d' % (tb, lane))
        a('v_and_b32 v%d, 4, v%d' % (tb, tb))
        a('v_xor_b32 v%d, v%d, v%d' % (tb, tb, lane))
        a('v_and_b32 v%d, 7, v%d' % (tb, tb))
        a('v_lshl_add_u32 v%d, v%d, 4, v%d' % (vdw, tb, ta))
        a('s_min_u32 s25, s53, 26')
        a('s_lshl_b32 s26, s25, 7')
        a('v_add_u32 v%d, s26, v%d' % (vdw, vdw))
        a('s_lshl_b32 s27, s3, 10')
        a('s_mul_i32 s26, s25, 205')
        a('s_lshr_b32 s26, s26, 11')
        a('s_mul_i32 s26, s26, 10')
        a('s_sub_u32 s50, s25, s26')
        a('s_mov_b32 s51, s50')
        a('s_lshl_b32 s25, 1, s53')
        a('v_mov_b32 v%d, s25' % vold)
    a('s_waitcnt lgkmcnt(0)')
    ST()
    if fz:
        mksrd(a, 56, 2048, SYNC_OFF, 16)
        a('s_or_b32 s25, s54, s3')
        a('s_cmp_lg_u32 s25, 0')
        a('s_cbranch_scc1 k3_noclaim')
        a('s_mov_b64 exec, 1')
        a('buffer_atomic_or v%d, off, s[56:59], s55 sc0' % vold)
        a('s_mov_b64 exec, -1')
        a.label('k3_noclaim')
        mksrd(a, 40, WGB); mksrd(a, 44, WGB)
    mksrd(a, 28, XB, H_OFF, 16)
    mksrd(a, 32, 1024, WMAX_OFF, 16)
    mksrd(a, 36, XB, LN2_OFF, 16)
    mksrd(a, 4, XB); mksrd(a, 16, ZB, Z2_OFF)
    zd = R.a(8,4); t2 = R.a(); la = R.a()
    a('s_cmp_ge_u32 s3, 5')
    a('s_cbranch_scc1 k3_nold')
    a('v_lshlrev_b32 v%d, 5, v0' % t2)
    a('s_mul_i32 s21, s2, 10240')
    a('buffer_load_dwordx4 %s, v%d, s[16:19], s21 offen' % (vr(zd,4), t2))
    a('buffer_load_dwordx4 %s, v%d, s[16:19], s21 offen offset:16' % (vr(zd+4,4), t2))
    a.label('k3_nold')
    ef = R.a()
    st = load_wmax_ef(a, R, 32, lane, ef)
    Bre = R.a(4); Bim = R.a(4)
    twc = R.a(8); tws = R.a(8)
    H = {(ob,k): R.a(4) for ob in range(2) for k in 'csn'}
    tab_load(a, 14, tva, tvb, [Bre, Bim, twc, twc+4, tws, tws+4, H[0,'c'], H[0,'s'], H[1,'c'], H[1,'s']])
    xd = R.a(5)
    for i in range(5):
        a('buffer_load_dword v%d, v%d, s[4:7], s20 offen offset:%d' % (xd+i, xo, 64*i))
    WE = 0
    p = R.a(); k1 = R.a(); n1 = R.a(); c0 = R.a(); s0 = R.a(); c1 = R.a(); s1 = R.a(); g4 = R.a()
    ST()
    a('s_waitcnt vmcnt(%d)' % (15+2*WE if fz else 15))
    ST()
    if fz:
        a('s_cmp_lg_u32 s3, 0')
        a('s_cbranch_scc1 k3_cl_skip')
        a('s_mov_b32 s60, s53')
        a('s_cmp_lg_u32 s54, 0')
        a('s_cbranch_scc1 k3_cl_done')
        a.label('k3_cl_loop')
        a('v_readfirstlane_b32 s61, v%d' % vold)
        a('s_bitcmp0_b32 s61, s60')
        a('s_cbranch_scc1 k3_cl_done')
        a('s_not_b32 s61, s61')
        a('s_ff1_i32_b32 s60, s61')
        a('s_and_b32 s60, s60, 255')
        a('s_cmp_ge_u32 s60, 32')
        a('s_cbranch_scc1 k3_cl_done')
        a('s_lshl_b32 s61, 1, s60')
        a('v_mov_b32 v%d, s61' % vold)
        a('s_mov_b64 exec, 1')
        a('buffer_atomic_or v%d, off, s[56:59], s55 sc0' % vold)
        a('s_waitcnt vmcnt(0)')
        a('s_mov_b64 exec, -1')
        a('s_branch k3_cl_loop')
        a.label('k3_cl_done')
        a('v_mov_b32 v%d, s60' % ta)
        a('v_mov_b32 v%d, 0' % tb)
        a('ds_write_b32 v%d, v%d offset:10496' % (tb, ta))
        a.label('k3_cl_skip')
    finish_wmax_ef(a, R, st, ef)
    a('v_lshlrev_b32 v%d, 23, v%d' % (ef, ef))
    a('v_mul_f32 v%d, %s, v%d' % (ef, f32(0.1), ef))
    a('s_cmp_ge_u32 s3, 5')
    a('s_cbranch_scc1 k3_nowr')
    a('v_lshlrev_b32 v%d, 2, v0' % la)
    for q in range(4):
        a('ds_write2st64_b32 v%d, v%d, v%d offset0:%d offset1:%d' % (la, zd+2*q, zd+2*q+1, 10*q, 10*q+5))
    a.label('k3_nowr')
    a('s_waitcnt lgkmcnt(0)')
    a('s_barrier')
    ST()
    A = [R.a(4), R.a(4)]
    a('v_add_u32 v%d, s24, v%d' % (la, xo))
    a('v_and_b32 v%d, 3, v%d' % (k1, l15))
    a('v_mul_u32_u24 v%d, 320, v%d' % (t2, g))
    a('v_lshl_add_u32 v%d, v%d, 2, v%d' % (t2, k1, t2))
    a('v_add_u32 v%d, s24, v%d' % (t2, t2))
    a('ds_read2_b32 %s, v%d offset0:0 offset1:20' % (vr(A[0],2), la))
    a('ds_read2_b32 %s, v%d offset0:40 offset1:60' % (vr(A[0]+2,2), la))
    a('ds_read2_b32 %s, v%d offset0:16 offset1:36' % (vr(A[1],2), t2))
    a('ds_read2_b32 %s, v%d offset0:56 offset1:76' % (vr(A[1]+2,2), t2))
    if fz:
        a('v_mov_b32 v%d, 0' % tb)
        a('ds_read_b32 v%d, v%d offset:10496' % (ta, tb))
    a('s_waitcnt lgkmcnt(0)')
    if fz:
        a('v_readfirstlane_b32 s60, v%d' % ta)
        a('s_cmp_eq_u32 s60, s53')
        a('s_cbranch_scc1 k3_ok')
        a('s_waitcnt vmcnt(0)')
        a('s_barrier')
        a('s_mov_b32 s53, s60')
        a('s_mov_b32 s54, 1')
        a('s_cmp_ge_u32 s53, 32')
        a('s_cbranch_scc1 k3_kernel_end')
        a('s_branch k3_restart')
        a.label('k3_ok')
        fz_dmaw(a, 0)
    D = {}
    a('s_waitcnt vmcnt(%d)' % (7 if fz else 5))
    for rb in range(2):
        for c in range(2):
            D[rb,c] = R.a(4)
            mfma16(a, D[rb,c], A[rb], Bre if c == 0 else Bim, None)
    for ob in range(2):
        for jj in range(4):
            a('v_xor_b32 v%d, 0x80008000, v%d' % (H[ob,'n']+jj, H[ob,'s']+jj))
    Tr = R.a(4); Ti = R.a(4); tr_ = R.a(4); ti_ = R.a(4)
    for rb in range(2):
        for r in range(4):
            cmul_tw(a, D[rb,0]+r, D[rb,1]+r, twc+4*rb+r, tws+4*rb+r, tr_+r, ti_+r, +1)
        a('v_cvt_pk_f16_f32 v%d, v%d, v%d' % (Tr+2*rb, tr_, tr_+1))
        a('v_cvt_pk_f16_f32 v%d, v%d, v%d' % (Tr+2*rb+1, tr_+2, tr_+3))
        a('v_cvt_pk_f16_f32 v%d, v%d, v%d' % (Ti+2*rb, ti_, ti_+1))
        a('v_cvt_pk_f16_f32 v%d, v%d, v%d' % (Ti+2*rb+1, ti_+2, ti_+3))
    for ob in range(2):
        mfma16(a, D[ob,0], H[ob,'c'], Tr, None)
        mfma16(a, D[ob,1], H[ob,'s'], Tr, None)
    for ob in range(2):
        mfma16(a, D[ob,0], H[ob,'n'], Ti, D[ob,0])
        mfma16(a, D[ob,1], H[ob,'c'], Ti, D[ob,1])
    xf = R.a(10); hp = R.a(5); lp = R.a(5)
    ST()
    a('s_waitcnt vmcnt(%d)' % (2 if fz else 0))
    if fz: ST()
    for i in range(5):
        orr = D[0,0]+i if i < 4 else D[1,0]
        oi = D[0,1]+i if i < 4 else D[1,1]
        a('v_mul_f32 v%d, v%d, v%d' % (c0, orr, ef))
        a('v_mul_f32 v%d, v%d, v%d' % (s0, oi, ef))
        a('v_cvt_pk_bf16_f32 v%d, v%d, v%d' % (c1, c0, s0))
        a('v_lshlrev_b32 v%d, 16, v%d' % (c0, c1))
        a('v_and_b32 v%d, 0xffff0000, v%d' % (s0, c1))
        a('v_lshlrev_b32 v%d, 16, v%d' % (c1, xd+i))
        a('v_and_b32 v%d, 0xffff0000, v%d' % (s1, xd+i))
        a('v_add_f32 v%d, v%d, v%d' % (c0, c0, c1))
        a('v_add_f32 v%d, v%d, v%d' % (s0, s0, s1))
        a('v_cvt_pk_bf16_f32 v%d, v%d, v%d' % (hp+i, c0, s0))
        a('v_lshlrev_b32 v%d, 16, v%d' % (xf+2*i, hp+i))
        a('v_and_b32 v%d, 0xffff0000, v%d' % (xf+2*i+1, hp+i))
        a('buffer_store_dword v%d, v%d, s[28:31], s20 offen offset:%d%s' % (hp+i, xo, 64*i, os.environ.get('HSM',' sc1') if fz else ''))
    layernorm(a, R, xf, lp)
    for i in range(5):
        a('buffer_store_dword v%d, v%d, s[36:39], s20 offen offset:%d%s' % (lp+i, xo, 64*i, os.environ.get('LSM',' sc1') if fz else ''))
    if fz:
        fz_dmaw(a, 1)
        fz_stamp(a)
        return R.hi
    ST()
    if STAMP: a('s_waitcnt vmcnt(0)')
    ST.dump(3)
    kend(a, name)
    return name, R.hi, '; @launch kernel=k3_kernel grid=(256,1,1) block=(512,1,1) lds=10496'
```

```python
from common import *
FL = os.environ.get('FL','')

def gen_k2(a):
    name = 'k2_kernel'
    R = Regs(1)
    kstart(a, name, 256)
    ldptr(a, 16, 72)
    a('s_cmp_ge_u32 s2, 161')
    a('s_cbranch_scc1 k2_pack')
    ST = Stamper(a, 40); ST()
    lane = R.a(); l15 = R.a(); g = R.a(); g4 = R.a(); k1 = R.a(); zo = R.a()
    a('v_lshrrev_b32 v%d, 6, v0' % lane)
    a('v_readfirstlane_b32 s3, v%d' % lane)
    a('v_and_b32 v%d, 63, v0' % lane)
    a('v_and_b32 v%d, 15, v0' % l15)
    a('v_bfe_u32 v%d, v0, 4, 2' % g)
    a('v_lshlrev_b32 v%d, 2, v%d' % (g4, g))
    a('s_lshl_b32 s4, s3, 4')
    a('v_add_u32 v%d, s4, v%d' % (k1, l15))
    a('v_lshlrev_b32 v%d, 8, v%d' % (zo, l15))
    a('v_lshl_add_u32 v%d, v%d, 4, v%d' % (zo, g, zo))
    a('s_sub_u32 s5, 320, s2')
    a('s_cmp_eq_u32 s2, 0')
    a('s_cselect_b32 s5, 0, s5')
    a('s_lshl_b32 s6, s2, 13')
    a('s_lshl_b32 s7, s5, 13')
    a('s_add_u32 s8, s6, 4096')
    a('s_add_u32 s9, s7, 4096')
    a('s_add_u32 s10, s6, %d' % (162*8192))
    a('s_waitcnt lgkmcnt(0)')
    ST()
    mksrd(a, 20, ZB, Z2_OFF, 16)
    mksrd(a, 28, TCOLS*8192, TA_OFF, 16)
    mksrd(a, 32, 1024, WMAX_OFF, 16)
    mksrd(a, 16, ZB)
    Z = {}
    for col in range(2):
        for rb in range(2):
            for t in range(4):
                Z[col,rb,t] = R.a(4)
                a('buffer_load_dwordx4 %s, v%d, s[16:19], s%d offen offset:%d' % (vr(Z[col,rb,t],4), zo, 6+col+2*rb, 64*t))
    ef = R.a()
    st = load_wmax_ef(a, R, 32, lane, ef)
    TA = R.a(8,4); TB = R.a(8,4); TA2 = R.a(8,4); TB2 = R.a(8,4); to = R.a()
    a('v_lshlrev_b32 v%d, 5, v0' % to)
    for (T, so) in ((TA,'s6'),(TB,'s10')):
        a('buffer_load_dwordx4 %s, v%d, s[28:31], %s offen' % (vr(T,4), to, so))
        a('buffer_load_dwordx4 %s, v%d, s[28:31], %s offen offset:16' % (vr(T+4,4), to, so))
    a('s_mov_b32 s11, %d' % (161*8192))
    a('s_mov_b32 s12, %d' % (323*8192))
    for (T, so) in ((TA2,'s11'),(TB2,'s12')):
        a('buffer_load_dwordx4 %s, v%d, s[28:31], %s offen' % (vr(T,4), to, so))
        a('buffer_load_dwordx4 %s, v%d, s[28:31], %s offen offset:16' % (vr(T+4,4), to, so))
    Bre = [R.a(4) for t in range(4)]; Bim = [R.a(4) for t in range(4)]
    F = {(ob,k): R.a(4) for ob in range(2) for k in 'csn'}
    twc = R.a(8); tws = R.a(8); iwc = Z[0,0,2]; iws = Z[1,0,2]
    p = R.a(); q = R.a(); c0 = R.a(); s0 = R.a(); c1 = R.a(); s1 = R.a(); m = R.a()
    a('v_mul_u32_u24 v%d, v%d, v%d' % (p, g4, k1))
    for t in range(4):
        for i in range(4):
            a('v_and_b32 v%d, 63, v%d' % (q, p))
            cs(a, q, 64, c0, s0)
            if t < 2:
                cs(a, p, 2048, twc+4*t+i, tws+4*t+i)
            a('v_add_u32 v%d, v%d, v%d' % (p, p, k1))
            a('v_mul_f32 v%d, %s, v%d' % (c0, f32(0.125), c0))
            a('v_mul_f32 v%d, %s, v%d' % (s0, f32(0.125), s0))
            a('v_cvt_pk_f16_f32 v%d, v%d, v%d' % (Bre[t]+i, c0, s0))
            a('v_cvt_pk_f16_f32 v%d, -v%d, v%d' % (Bim[t]+i, s0, c0))
        if t < 3: a('v_mad_u32_u24 v%d, 12, v%d, v%d' % (p, k1, p))
    for ob in range(2):
        a('v_add_u32 v%d, %d, v%d' % (m, 16*ob, l15))
        a('v_mul_u32_u24 v%d, v%d, v%d' % (p, g4, m))
        for jj in range(4):
            if jj == 2: a('v_mad_u32_u24 v%d, 12, v%d, v%d' % (p, m, p))
            for (cc, ss) in ((c0,s0),(c1,s1)):
                a('v_and_b32 v%d, 31, v%d' % (q, p))
                cs(a, q, 32, cc, ss)
                a('v_add_u32 v%d, v%d, v%d' % (p, p, m))
                a('v_mul_f32 v%d, %s, v%d' % (cc, f32(0.25), cc))
                a('v_mul_f32 v%d, %s, v%d' % (ss, f32(0.25), ss))
            a('v_cvt_pk_f16_f32 v%d, v%d, v%d' % (F[ob,'c']+jj, c0, c1))
            a('v_cvt_pk_f16_f32 v%d, v%d, v%d' % (F[ob,'s']+jj, s0, s1))
            a('v_cvt_pk_f16_f32 v%d, -v%d, -v%d' % (F[ob,'n']+jj, s0, s1))
    tr = R.a(); ti = R.a(); trs = R.a(); tis = R.a(); sc = R.a()
    a('v_mov_b32 v%d, s2' % p)
    cs(a, p, 640, ti, tr)
    a('v_xor_b32 v%d, 0x80000000, v%d' % (tr, tr))
    a('v_xor_b32 v%d, 0x80000000, v%d' % (ti, ti))
    ST()
    a('s_waitcnt vmcnt(17)')
    ST()
    D = {}
    def step1(col):
        for rb in range(2):
            for c in range(2):
                D[col,rb,c] = R.a(4)
        for t in range(4):
            for rb in range(2):
                for c in range(2):
                    mfma16(a, D[col,rb,c], Z[col,rb,t], (Bre if c == 0 else Bim)[t], None if t == 0 else D[col,rb,c])
    step1(0)
    a('s_waitcnt vmcnt(9)')
    for rb in range(2):
        for t in range(4):
            for i in range(4):
                a('v_xor_b32 v%d, 0x80000000, v%d' % (Z[1,rb,t]+i, Z[1,rb,t]+i))
    step1(1)
    a('s_waitcnt vmcnt(8)')
    finish_wmax_ef(a, R, st, ef)
    a('v_sub_u32 v%d, 252, v%d' % (sc, ef))
    a('v_lshlrev_b32 v%d, 23, v%d' % (sc, sc))
    a('v_mul_f32 v%d, v%d, v%d' % (trs, tr, sc))
    a('v_mul_f32 v%d, v%d, v%d' % (tis, ti, sc))
    tr_ = R.a(4); ti_ = R.a(4)
    P = {}
    O = {}
    for col in range(2):
        Pr = Z[col,0,0]; Pi = Z[col,0,1]
        for rb in range(2):
            for r in range(4):
                cmul_tw(a, D[col,rb,0]+r, D[col,rb,1]+r, twc+4*rb+r, tws+4*rb+r, tr_+r, ti_+r, -1)
            a('v_cvt_pk_f16_f32 v%d, v%d, v%d' % (Pr+2*rb, tr_, tr_+1))
            a('v_cvt_pk_f16_f32 v%d, v%d, v%d' % (Pr+2*rb+1, tr_+2, tr_+3))
            a('v_cvt_pk_f16_f32 v%d, v%d, v%d' % (Pi+2*rb, ti_, ti_+1))
            a('v_cvt_pk_f16_f32 v%d, v%d, v%d' % (Pi+2*rb+1, ti_+2, ti_+3))
        for ob in range(2):
            mfma16(a, D[col,ob,0], F[ob,'c'], Pr, None)
            mfma16(a, D[col,ob,1], F[ob,'c'], Pi, None)
        for ob in range(2):
            mfma16(a, D[col,ob,0], F[ob,'s'], Pi, D[col,ob,0])
            mfma16(a, D[col,ob,1], F[ob,'n'], Pr, D[col,ob,1])
    for ob in range(2):
        a('v_add_u32 v%d, %d, v%d' % (m, 16*ob, l15))
        a('v_add_u32 v%d, s4, v%d' % (q, g4))
        a('v_mul_u32_u24 v%d, v%d, v%d' % (p, q, m))
        for r in range(4):
            cs(a, p, 2048, iwc+4*ob+r, iws+4*ob+r)
            if r < 3: a('v_add_u32 v%d, v%d, v%d' % (p, p, m))
    Hc = [Z[0,1,0], Z[0,1,1]]; Hs = [Z[0,1,2], Z[0,1,3]]; Hn = [Z[1,1,0], Z[1,1,1]]
    a('s_mov_b32 s13, 0x05040100')
    a('s_mov_b32 s14, 0x07060302')
    for t in range(2):
        for jj in range(4):
            tp = 2*t + (jj >> 1); i = 2*(jj & 1)
            a('v_perm_b32 v%d, v%d, v%d, s13' % (Hc[t]+jj, Bre[tp]+i+1, Bre[tp]+i))
            a('v_perm_b32 v%d, v%d, v%d, s14' % (Hs[t]+jj, Bre[tp]+i+1, Bre[tp]+i))
            a('v_perm_b32 v%d, v%d, v%d, s13' % (Hn[t]+jj, Bim[tp]+i+1, Bim[tp]+i))
    ST()
    a('s_waitcnt vmcnt(0)')
    Sr,Si,Dr,Di,Or,Oi,X1r,X1i = [twc+i for i in range(8)]
    X2r,X2i,V1r,V1i,V2r,V2i = [tws+i for i in range(6)]
    a1r,a1i,a2r,a2i = [Z[1,1,2]+i for i in range(4)]
    a('s_cmp_eq_u32 s2, 0')
    a('s_cbranch_scc1 k2_z0')
    for ver in range(2):
      if ver == 1:
        a('s_branch k2_nz')
        a.label('k2_z0')
      for e in range(8):
        ob = e >> 2; r = e & 3
        a('v_lshlrev_b32 v%d, 16, v%d' % (a1r, TA+e))
        a('v_and_b32 v%d, 0xffff0000, v%d' % (a1i, TA+e))
        a('v_lshlrev_b32 v%d, 16, v%d' % (a2r, TB+e))
        a('v_and_b32 v%d, 0xffff0000, v%d' % (a2i, TB+e))
        if ver == 1:
          for (wr_, wi_, T2) in ((a1r,a1i,TA2),(a2r,a2i,TB2)):
            a('v_lshlrev_b32 v%d, 16, v%d' % (c0, T2+e))
            a('v_and_b32 v%d, 0xffff0000, v%d' % (s0, T2+e))
            a('v_add_f32 v%d, v%d, v%d' % (wr_, wr_, c0))
            a('v_sub_f32 v%d, v%d, v%d' % (wi_, wi_, s0))
            a('v_mul_f32 v%d, 0.5, v%d' % (wr_, wr_))
            a('v_mul_f32 v%d, 0.5, v%d' % (wi_, wi_))
        ar = D[0,ob,0]+r; ai = D[0,ob,1]+r; br = D[1,ob,0]+r; bi = D[1,ob,1]+r
        a('''v_add_f32 v{Sr}, v{ar}, v{br}
v_add_f32 v{Si}, v{ai}, v{bi}
v_sub_f32 v{Dr}, v{ar}, v{br}
v_sub_f32 v{Di}, v{ai}, v{bi}
v_mul_f32 v{Or}, v{trs}, v{Dr}
v_mul_f32 v{Oi}, v{trs}, v{Di}
v_fma_f32 v{Or}, -v{tis}, v{Di}, v{Or}
v_fmac_f32 v{Oi}, v{tis}, v{Dr}
v_fma_f32 v{X1r}, v{sc}, v{Sr}, v{Or}
v_fma_f32 v{X1i}, v{sc}, v{Si}, v{Oi}
v_fma_f32 v{X2r}, v{sc}, v{Sr}, -v{Or}
v_fma_f32 v{X2i}, v{sc}, v{Si}, -v{Oi}
v_mul_f32 v{V1r}, v{X1r}, v{a1r}
v_mul_f32 v{V1i}, v{X1r}, v{a1i}
v_mul_f32 v{V2r}, v{X2r}, v{a2r}
v_mul_f32 v{V2i}, v{X2i}, v{a2r}
v_fma_f32 v{V1r}, -v{X1i}, v{a1i}, v{V1r}
v_fmac_f32 v{V1i}, v{X1i}, v{a1r}
v_fmac_f32 v{V2r}, v{X2i}, v{a2i}
v_fma_f32 v{V2i}, -v{X2r}, v{a2i}, v{V2i}
v_add_f32 v{Sr}, v{V1r}, v{V2r}
v_add_f32 v{Si}, v{V1i}, v{V2i}
v_sub_f32 v{Dr}, v{V1r}, v{V2r}
v_sub_f32 v{Di}, v{V1i}, v{V2i}
v_mul_f32 v{Or}, v{tr}, v{Dr}
v_mul_f32 v{Oi}, v{tr}, v{Di}
v_fmac_f32 v{Or}, v{ti}, v{Di}
v_fma_f32 v{Oi}, -v{ti}, v{Dr}, v{Oi}
v_add_f32 v{ar}, v{Sr}, v{Or}
v_add_f32 v{ai}, v{Si}, v{Oi}
v_sub_f32 v{br}, v{Sr}, v{Or}
v_sub_f32 v{bi}, v{Si}, v{Oi}'''.format(**locals()))
    a.label('k2_nz')
    ST()
    la = R.a()
    a('v_lshlrev_b32 v%d, 4, v%d' % (la, lane))
    a('s_lshr_b32 s15, s3, 1')
    a('s_lshl_b32 s15, s15, 10')
    a('s_and_b32 s24, s3, 1')
    a('s_lshl_b32 s24, s24, 3')
    a('s_add_u32 s15, s15, s24')
    lw = R.a()
    a('v_add_u32 v%d, s15, v%d' % (lw, la))
    T = {}
    for col in range(2):
        Pr = Z[col,0,0]; Pi = Z[col,0,1]
        for ob in range(2):
            for h in range(2):
                a('v_cvt_pk_f16_f32 v%d, v%d, v%d' % (Pr+2*ob+h, D[col,ob,0]+2*h, D[col,ob,0]+2*h+1))
                a('v_cvt_pk_f16_f32 v%d, v%d, v%d' % (Pi+2*ob+h, D[col,ob,1]+2*h, D[col,ob,1]+2*h+1))
        for cb in range(2):
            mfma16(a, D[col,cb,0], Pr, F[cb,'c'], None)
            mfma16(a, D[col,cb,1], Pr, F[cb,'s'], None)
        for cb in range(2):
            mfma16(a, D[col,cb,0], Pi, F[cb,'n'], D[col,cb,0])
            mfma16(a, D[col,cb,1], Pi, F[cb,'c'], D[col,cb,1])
    for col in range(2):
        for cb in range(2):
            for r in range(4):
                cmul_tw(a, D[col,cb,0]+r, D[col,cb,1]+r, iwc+4*cb+r, iws+4*cb+r, tr_+r, ti_+r, +1)
            a('v_cvt_pk_f16_f32 v%d, v%d, v%d' % (D[col,cb,0], tr_, tr_+1))
            a('v_cvt_pk_f16_f32 v%d, v%d, v%d' % (D[col,cb,0]+1, tr_+2, tr_+3))
            a('v_cvt_pk_f16_f32 v%d, v%d, v%d' % (D[col,cb,0]+2, ti_, ti_+1))
            a('v_cvt_pk_f16_f32 v%d, v%d, v%d' % (D[col,cb,0]+3, ti_+2, ti_+3))
            for c in range(2):
                a('ds_write_b64 v%d, %s offset:%d' % (lw, vr(D[col,cb,0]+2*c,2), ((col*2+cb)*2+c)*2048))
    a('s_waitcnt lgkmcnt(0)')
    a('s_barrier')
    ST()
    TT = {}
    pool = Bre + Bim + [TA, TA+4, TB, TB+4, TA2, TA2+4, TB2, TB2+4]
    for col in range(2):
        for cb in range(2):
            for c in range(2):
                for t in range(2):
                    TT[col,cb,c,t] = pool.pop()
                    a('ds_read_b128 %s, v%d offset:%d' % (vr(TT[col,cb,c,t],4), la, ((col*2+cb)*2+c)*2048 + t*1024))
    a('v_lshrrev_b32 v%d, 1, v%d' % (zo, g))
    a('s_lshl_b32 s24, s3, 1')
    a('v_add_u32 v%d, s24, v%d' % (zo, zo))
    a('v_lshl_add_u32 v%d, v%d, 5, v%d' % (zo, zo, l15))
    a('v_mul_u32_u24 v%d, 10240, v%d' % (zo, zo))
    a('v_and_b32 v%d, 1, v%d' % (lw, g))
    a('v_lshl_add_u32 v%d, v%d, 4, v%d' % (zo, lw, zo))
    a('s_lshl_b32 s6, s2, 5')
    a('s_lshl_b32 s7, s5, 5')
    a('s_add_u32 s8, s6, 163840')
    a('s_add_u32 s9, s7, 163840')
    for col in range(2):
        a('s_waitcnt lgkmcnt(%d)' % (8 if col == 0 else 0))
        for t in range(2):
            for cb in range(2):
                mfma16(a, D[col,cb,0], Hc[t], TT[col,cb,0,t], None if t == 0 else D[col,cb,0])
                mfma16(a, D[col,cb,1], Hs[t], TT[col,cb,0,t], None if t == 0 else D[col,cb,1])
            for cb in range(2):
                mfma16(a, D[col,cb,0], Hn[t], TT[col,cb,1,t], D[col,cb,0])
                mfma16(a, D[col,cb,1], Hc[t], TT[col,cb,1,t], D[col,cb,1])
    for col in range(2):
        if col == 1:
            a('s_cmp_eq_u32 s2, s5')
            a('s_cbranch_scc1 %s_end' % name)
        for cb in range(2):
            for r in range(4):
                a('v_cvt_pk_f16_f32 v%d, v%d, %sv%d' % (D[col,cb,0]+r, D[col,cb,0]+r, '-' if col else '', D[col,cb,1]+r))
            a('buffer_store_dwordx4 %s, v%d, s[20:23], s%d offen' % (vr(D[col,cb,0],4), zo, 6+col+2*cb))
    if STAMP: a('s_waitcnt vmcnt(0)')
    ST.dump(3)
    a('s_endpgm')
    a.label('k2_pack')
    ldptr(a, 4, 48); ldptr(a, 8, 32); ldptr(a, 12, 40)
    a('s_sub_u32 s3, s2, 161')
    a('v_mul_u32_u24 v1, 205, v0')
    a('v_lshrrev_b32 v1, 14, v1')
    a('v_mul_u32_u24 v2, 80, v1')
    a('v_sub_u32 v2, v0, v2')
    a('v_mul_u32_u24 v3, 205, v2')
    a('v_lshrrev_b32 v3, 11, v3')
    a('v_mul_u32_u24 v4, 10, v3')
    a('v_sub_u32 v4, v2, v4')
    a('s_mul_i32 s20, s3, 3')
    a('v_add_u32 v1, s20, v1')
    a('v_mul_u32_u24 v5, 1280, v1')
    a('v_lshl_add_u32 v5, v2, 4, v5')
    a('v_mul_u32_u24 v3, 1728, v3')
    a('v_add_u32 v3, v3, v1')
    a('v_mul_u32_u24 v3, 160, v3')
    a('v_lshl_add_u32 v6, v4, 4, v3')
    a('v_mov_b32 v7, 0x7f000000')
    a('v_cmp_gt_u32 vcc, 240, v0')
    a('v_cndmask_b32 v5, v7, v5, vcc')
    a('v_cndmask_b32 v6, v7, v6, vcc')
    a('s_lshl_b32 s21, s3, 12')
    a('v_lshlrev_b32 v8, 4, v0')
    a('v_add_u32 v8, s21, v8')
    a('s_waitcnt lgkmcnt(0)')
    mksrd(a, 24, 2048, SYNC_OFF, 16)
    a('s_cmp_lg_u32 s2, 255')
    a('s_cbranch_scc1 k2_nozero')
    a('v_lshlrev_b32 v9, 3, v0')
    a('v_mov_b32 v10, 0')
    a('v_mov_b32 v11, 0')
    a('buffer_store_dwordx2 v[10:11], v9, s[24:27], 0 offen')
    a.label('k2_nozero')
    mksrd(a, 16, WDB, WDP_OFF)
    mksrd(a, 4, WDB); mksrd(a, 8, WGB); mksrd(a, 12, WGB)
    for i in range(7):
        a('s_mov_b32 s22, %d' % (i*285*1280))
        a('buffer_load_dwordx4 %s, v5, s[4:7], s22 offen' % vr(12+4*i,4))
    NW = 0 if 'W' in FL else 12
    for i in range(NW//2):
        a('s_mov_b32 s22, %d' % (i*95*4096))
        a('buffer_load_dwordx4 %s, v8, s[8:11], s22 offen' % vr(40+8*i,4))
        a('buffer_load_dwordx4 %s, v8, s[12:15], s22 offen' % vr(44+8*i,4))
    for i in range(7):
        a('v_add_u32 v9, %d, v1' % (285*i))
        a('v_cmp_gt_u32 vcc, 1728, v9')
        a('v_add_u32 v9, %d, v6' % (285*160*i))
        a('v_cndmask_b32 v9, v7, v9, vcc')
        a('s_waitcnt vmcnt(%d)' % (6+NW))
        a('buffer_store_dwordx4 %s, v9, s[16:19], 0 offen' % vr(12+4*i,4))
    a('s_waitcnt vmcnt(0)')
    kend(a, name)
    return name, R.hi, '; @launch kernel=k2_kernel grid=(256,1,1) block=(256,1,1) lds=16384'
```

```python
from common import *
import os
FL = os.environ.get('FL','')
MOD = (' nt' if 'N' in FL else '') + (' sc1' if 'S' in FL else '') + (' sc0' if 'T' in FL else '')

WDW = int(os.environ.get('WDW', '1'))
WDS = int(os.environ.get('WDS', '0'))
WNT = ' nt' if os.environ.get('WNT') else ''
GSM = os.environ.get('GSM', ' sc1')
NPF = int(os.environ.get('NPF', '7'))
def gen_k4(a, fz=False):
    name = 'k4_kernel'
    R = Regs(1)
    if not fz:
        kstart(a, name, 216)
        ldptr(a, 8, 32); ldptr(a, 12, 40); ldptr(a, 16, 72)
    if 't' in FL:
        a('s_memtime s[40:41]'); a('s_memrealtime s[42:43]'); ldptr(a, 48, 64)
    l = R.a(); t = R.a(); t2 = R.a(); t3 = R.a()
    a('v_lshrrev_b32 v%d, 6, v0' % l)
    a('v_readfirstlane_b32 s3, v%d' % l)
    a('v_and_b32 v%d, 63, v0' % l)
    a('s_and_b32 s4, s2, 7')
    a('s_lshr_b32 s5, s2, 3')
    if fz:
        a('s_mov_b32 s4, s52')
        a('s_mov_b32 s5, s53')
        a('s_mov_b32 s32, s51')
    elif 'm' not in FL:
        a('s_mul_i32 s4, s4, 27')
        a('s_add_u32 s4, s4, s5')
        a('s_cmp_ge_u32 s4, 108')
        a('s_cselect_b32 s6, 108, 0')
        a('s_cselect_b32 s7, 4, 0')
        a('s_sub_u32 s4, s4, s6')
        a('s_lshr_b32 s5, s4, 2')
        a('s_and_b32 s4, s4, 3')
        a('s_mul_i32 s32, s4, 5')
        a('s_lshr_b32 s32, s32, 1')
        a('s_add_u32 s32, s32, s5')
        a('s_mul_i32 s33, s32, 205')
        a('s_lshr_b32 s33, s33, 11')
        a('s_mul_i32 s33, s33, 10')
        a('s_sub_u32 s32, s32, s33')
        a('s_add_u32 s4, s4, s7')
    else:
        a('s_mov_b32 s32, 0')
    if 'z' in FL:
        a('s_mov_b32 s4, 0')
        a('s_mov_b32 s5, 0')
    a('s_lshr_b32 s6, s3, 1')
    a('s_and_b32 s7, s3, 1')
    vdx = R.a(4); vdw = R.a()
    a('s_lshl_b32 s24, s4, 8')
    a('s_lshl_b32 s25, s3, 5')
    a('s_add_u32 s24, s24, s25')
    a('v_lshrrev_b32 v%d, 3, v%d' % (t, l))
    a('v_add_u32 v%d, s24, v%d' % (t2, t))
    a('v_mul_u32_u24 v%d, 1280, v%d' % (t2, t2))
    a('v_lshrrev_b32 v%d, 4, v%d' % (t3, l))
    a('v_xor_b32 v%d, v%d, v%d' % (t3, t3, l))
    a('v_and_b32 v%d, 7, v%d' % (t3, t3))
    for i in range(4):
        if i & 1: a('v_xor_b32 v%d, 4, v%d' % (vdx+i, t3))
        else: a('v_mov_b32 v%d, v%d' % (vdx+i, t3))
        a('v_lshl_add_u32 v%d, v%d, 4, v%d' % (vdx+i, vdx+i, t2))
        if i: a('v_add_u32 v%d, %d, v%d' % (vdx+i, 8*i*1280, vdx+i))
    a('s_lshl_b32 s25, s3, 3')
    a('v_add_u32 v%d, s25, v%d' % (t2, t))
    a('v_mul_u32_u24 v%d, 3456, v%d' % (t2, t2))
    a('v_lshrrev_b32 v%d, 2, v%d' % (t3, l))
    a('v_and_b32 v%d, 4, v%d' % (t3, t3))
    a('v_xor_b32 v%d, v%d, v%d' % (t3, t3, l))
    a('v_and_b32 v%d, 7, v%d' % (t3, t3))
    a('v_lshl_add_u32 v%d, v%d, 4, v%d' % (vdw, t3, t2))
    a('s_lshl_b32 s25, s5, 7')
    a('v_add_u32 v%d, s25, v%d' % (vdw, vdw))
    a('s_lshl_b32 s26, s3, 12')
    a('s_lshl_b32 s27, s3, 10')
    if fz:
        mksrd(a, 20, GUB, GU_OFF, 48)
        mksrd(a, 16, XB, LN2_OFF, 48)
        mksrd(a, 8, WDB, WDP_OFF, 48)
        a('v_lshlrev_b32 v206, 4, v%d' % l)
        a('s_lshl_b32 s12, s53, 3')
        a('s_add_u32 s12, s12, s3')
        a('s_lshl_b32 s13, s12, 12')
        a('s_add_u32 s13, s13, %d' % (1296*1024))
        a('s_sub_u32 s12, s12, 216')
        a('s_mul_i32 s12, s12, %d' % (33*1024))
    else:
        a('s_waitcnt lgkmcnt(0)')
        mksrd(a, 20, GUB, GU_OFF, 16)
        mksrd(a, 16, XB, LN2_OFF)
        mksrd(a, 8, WGB); mksrd(a, 12, WGB)
    def dma_list(kt):
        if 'a' in FL: return []
        sb = (kt % 3) * 49152
        L = []
        a('s_lshl_b32 s28, s32, 7')
        if not fz: a('s_mul_i32 s29, s32, 221184')
        a('s_add_u32 s32, s32, 1')
        a('s_cmp_eq_u32 s32, 10')
        a('s_cselect_b32 s32, 0, s32')
        def one(m0b, m0o, va, srd, so):
            def f():
                a('s_add_u32 m0, s%d, %d' % (m0b, m0o))
                a('buffer_load_dwordx4 v%d, s[%d:%d], s%d offen%s lds' % (va, srd, srd+3, so, (WNT if srd >= 40 else '')) + MOD)
            return f
        if 'w' not in FL:
            if fz:
                if kt >= 2:
                    a('s_mul_i32 s63, s50, 221184')
                    a('s_add_u32 s50, s50, 1')
                    a('s_cmp_eq_u32 s50, 10')
                    a('s_cselect_b32 s50, 0, s50')
                    L += [one(27, sb+32768, 204, 40, 63), one(27, sb+40960, 204, 44, 63)]
            else:
                L += [one(27, sb+32768, vdw, 8, 29), one(27, sb+40960, vdw, 12, 29)]
        if 'x' not in FL:
            L += [one(26, sb+i*1024, vdx+i, 16, 28) for i in range(4)]
        return L
    def dma(kt):
        for f in dma_list(kt): f()
    if not fz:
        dma(0); dma(1)
    else:
        a('s_waitcnt vmcnt(2)')
        a('s_barrier')
        fz_stamp(a)
        fz_arrive(a, 'k4_aA', 64)
        a('s_cmp_ge_u32 s53, 27')
        a('s_cbranch_scc1 k4_idle')
    vX = [R.a(4), R.a(4)]; vW = R.a(3)
    a('v_and_b32 v%d, 31, v%d' % (t, l))
    a('s_lshl_b32 s25, s6, 6')
    a('v_add_u32 v%d, s25, v%d' % (t, t))
    rowl = R.a()
    a('v_mov_b32 v%d, v%d' % (rowl, t))
    a('v_lshlrev_b32 v%d, 7, v%d' % (t, t))
    a('v_lshrrev_b32 v%d, 5, v%d' % (t2, l))
    a('v_bfe_u32 v%d, v%d, 1, 3' % (t3, l))
    a('v_xor_b32 v%d, v%d, v%d' % (t3, t3, t2))
    for ks in range(4):
        a('v_xor_b32 v%d, %d, v%d' % (vX[0]+ks, 2*ks, t3))
        a('v_lshl_add_u32 v%d, v%d, 4, v%d' % (vX[0]+ks, vX[0]+ks, t))
        a('v_add_u32 v%d, %d, v%d' % (vX[1]+ks, 98304, vX[0]+ks))
    a('v_bfe_u32 v%d, v%d, 2, 2' % (t, l))
    a('v_lshl_add_u32 v%d, v%d, 3, v%d' % (t3, t2, t))
    a('v_lshlrev_b32 v%d, 7, v%d' % (t3, t3))
    a('v_lshrrev_b32 v%d, 1, v%d' % (t, t))
    a('v_lshlrev_b32 v%d, 6, v%d' % (t, t))
    a('v_and_b32 v%d, 3, v%d' % (vW, l))
    a('v_lshlrev_b32 v%d, 3, v%d' % (vW, vW))
    a('v_and_b32 v%d, 16, v%d' % (vW+1, l))
    a('v_lshl_add_u32 v%d, v%d, 1, v%d' % (vW, vW+1, vW))
    a('s_lshl_b32 s25, s7, 6')
    a('v_add_u32 v%d, s25, v%d' % (vW, vW))
    a('v_xor_b32 v%d, v%d, v%d' % (vW, vW, t))
    a('v_add_u32 v%d, v%d, v%d' % (vW, vW, t3))
    a('v_add_u32 v%d, 32768, v%d' % (vW, vW))
    a('v_add_u32 v%d, 49152, v%d' % (vW+1, vW))
    a('v_add_u32 v%d, 98304, v%d' % (vW+2, vW))
    acc = {(rb,gu): R.a(16) for rb in range(2) for gu in range(2)}
    FX = {(ks,rb): R.a(4) for ks in range(4) for rb in range(2)}
    FW = {(ks,gu): R.a(4) for ks in range(4) for gu in range(2)}
    def rlist(kt, ks):
        if 'b' in FL: return []
        st = kt % 3
        L = []
        for gu in range(2):
            for q in range(2):
                L.append('ds_read_b64_tr_b16 %s, v%d offset:%d' % (vr(FW[ks,gu]+2*q,2), vW+st, ks*2048+q*512+gu*8192))
        for rb in range(2):
            L.append('ds_read_b128 %s, v%d offset:%d' % (vr(FX[ks,rb],4), vX[st>>1]+ks, rb*4096 + (st&1)*49152))
        return L
    def reads(kt, ks):
        for x in rlist(kt, ks): a(x)
    pend = []
    ILV = int(os.environ.get('ILV', '2'))
    def mm(kt, ks, side=()):
        side = list(side); per = (len(side)+3)//4
        for rb in range(2):
            for gu in range(2):
                c = '0' if (kt == 0 and ks == 0) else vr(acc[rb,gu],16)
                if not ('c' in FL and kt+ks > 0):
                    a('v_mfma_f32_32x32x16_bf16 %s, %s, %s, %s' % (vr(acc[rb,gu],16), vr(FW[ks,gu],4), vr(FX[ks,rb],4), c))
                for x in side[:per]: a(x)
                side = side[per:]
                if pend and (ks*4+rb*2+gu) % max(ILV,1) == ILV-1: pend.pop(0)()
    if fz:
        def oth():
            for i in range(NPF-2):
                fz_pfw(a)
                a('s_waitcnt vmcnt(2)')
        fz_wait(a, 'k4_wA', 64, 32, 0, None)
        if 'D' in FL: a('s_sleep 80')
        fz_stamp(a)
        dma(0); dma(1)
    for kt in range(10):
        if 'n' not in FL or kt == 9:
            a('s_waitcnt vmcnt(%d)' % ((4 if (fz and kt < 1) else 6) if kt < 9 else (4 if (fz and WDW) else 0)))
            a('s_barrier')
            if fz and 'K' in FL and kt < 6: fz_stamp(a)
        if 'O' in FL or 'V' in FL or kt == 0:
            reads(kt, 0); reads(kt, 1)
        if kt + 2 <= 9:
            if ILV: pend += dma_list(kt+2)
            else: dma(kt+2)
        elif fz and kt == 8 and WDW:
            for i in range(4):
                pend.append(lambda i=i: a('buffer_load_dwordx4 v[%d:%d], v206, s[8:11], s13 offen offset:%d' % (208+4*(i&1), 211+4*(i&1), 1024*i)))
        if 'O' in FL:
            a('s_waitcnt lgkmcnt(6)')
            reads(kt, 2)
            mm(kt, 0)
            a('s_waitcnt lgkmcnt(6)')
            reads(kt, 3)
            mm(kt, 1)
            a('s_waitcnt lgkmcnt(6)')
            mm(kt, 2)
            a('s_waitcnt lgkmcnt(0)')
            mm(kt, 3)
        elif 'V' not in FL and kt > 0:
            mm(kt-1, 2, rlist(kt, 0) + rlist(kt, 1))
            a('s_waitcnt lgkmcnt(6)')
            mm(kt-1, 3, rlist(kt, 2))
            a('s_waitcnt lgkmcnt(6)')
            mm(kt, 0, rlist(kt, 3))
            mm(kt, 1)
            a('s_waitcnt lgkmcnt(0)')
            if kt == 9:
                mm(kt, 2); mm(kt, 3)
        else:
            if kt == 0:
                while pend: pend.pop(0)()
            if kt: mm(kt-1, 2)
            a('s_waitcnt lgkmcnt(6)')
            reads(kt, 2)
            if kt: mm(kt-1, 3)
            a('s_waitcnt lgkmcnt(6)')
            reads(kt, 3)
            mm(kt, 0)
            mm(kt, 1)
            a('s_waitcnt lgkmcnt(0)')
            if kt == 9:
                mm(kt, 2); mm(kt, 3)
        assert not pend
    if fz: fz_stamp(a)
    vo = R.a(); vw_ = R.a(); vr_ = R.a()
    C1 = R.a(2); C2 = R.a(2); ONE = R.a(2)
    a('v_lshrrev_b32 v%d, 2, v%d' % (t, l))
    a('v_and_b32 v%d, 3, v%d' % (t2, l))
    a('s_lshl_b32 s25, s6, 6')
    a('v_add_u32 v%d, s25, v%d' % (t3, t))
    a('v_mul_u32_u24 v%d, 3456, v%d' % (vo, t3))
    a('v_lshl_add_u32 v%d, v%d, 4, v%d' % (vo, t2, vo))
    a('s_mul_i32 s25, s3, 5120')
    a('s_add_u32 s25, s25, 49152')
    a('v_mul_u32_u24 v%d, 80, v%d' % (vr_, t))
    a('v_lshl_add_u32 v%d, v%d, 4, v%d' % (vr_, t2, vr_))
    a('v_add_u32 v%d, s25, v%d' % (vr_, vr_))
    a('v_and_b32 v%d, 31, v%d' % (t, l))
    a('v_lshrrev_b32 v%d, 5, v%d' % (t2, l))
    a('v_mul_u32_u24 v%d, 80, v%d' % (vw_, t))
    a('v_lshl_add_u32 v%d, v%d, 3, v%d' % (vw_, t2, vw_))
    a('v_add_u32 v%d, s25, v%d' % (vw_, vw_))
    a('s_mul_i32 s24, s4, %d' % (256*3456))
    a('s_lshl_b32 s25, s5, 7')
    a('s_add_u32 s24, s24, s25')
    a('s_lshl_b32 s25, s7, 6')
    a('s_add_u32 s24, s24, s25')
    for j in range(1,4): a('s_add_u32 s%d, s24, %d' % (24+j, j*16*3456))
    c1 = -2*0.7978845608028654*math.log2(math.e)
    for k in range(2):
        a('v_mov_b32 v%d, %s' % (C1+k, f32(c1)))
        a('v_mov_b32 v%d, %s' % (C2+k, f32(c1*0.044715)))
        a('v_mov_b32 v%d, 1.0' % (ONE+k))
    T = [FX[ks,rb] for ks in range(4) for rb in range(2)]
    O = [FW[ks,gu_] for ks in range(4) for gu_ in range(2)]
    P2 = lambda r: vr(r,2)
    for rb in range(2):
        for qq in range(2):
            prs = range(4)
            def regs(pr):
                r0 = 8*qq + 2*pr
                tq = T[(qq*4+pr)]
                return acc[rb,0]+r0, acc[rb,1]+r0, tq, tq+2
            for pr in prs:
                g0, u0, X, E = regs(pr)
                a('v_cvt_pk_bf16_f32 v%d, v%d, v%d' % (X+1, g0, g0+1))
                a('v_cvt_pk_bf16_f32 v%d, v%d, v%d' % (u0+1, u0, u0+1))
                a('v_lshlrev_b32 v%d, 16, v%d' % (X, X+1))
                a('v_and_b32 v%d, 0xffff0000, v%d' % (X+1, X+1))
                a('v_pk_mul_f32 %s, %s, %s' % (P2(E), P2(X), P2(X)))
                a('v_pk_fma_f32 %s, %s, %s, %s' % (P2(E), P2(E), P2(C2), P2(C1)))
                a('v_pk_mul_f32 %s, %s, %s' % (P2(E), P2(E), P2(X)))
            for pr in prs:
                g0, u0, X, E = regs(pr)
                a('v_exp_f32 v%d, v%d' % (E, E))
                a('v_exp_f32 v%d, v%d' % (E+1, E+1))
                a('v_lshlrev_b32 v%d, 16, v%d' % (u0, u0+1))
                a('v_and_b32 v%d, 0xffff0000, v%d' % (u0+1, u0+1))
            for pr in prs:
                g0, u0, X, E = regs(pr)
                a('v_pk_add_f32 %s, %s, %s' % (P2(E), P2(E), P2(ONE)))
            for pr in prs:
                g0, u0, X, E = regs(pr)
                a('v_rcp_f32 v%d, v%d' % (E, E))
                a('v_rcp_f32 v%d, v%d' % (E+1, E+1))
            for pr in prs:
                g0, u0, X, E = regs(pr)
                o = O[rb*2+qq] + pr
                a('v_pk_mul_f32 %s, %s, %s' % (P2(X), P2(X), P2(E)))
                a('v_cvt_pk_bf16_f32 v%d, v%d, v%d' % (X+1, X, X+1))
                a('v_lshlrev_b32 v%d, 16, v%d' % (X, X+1))
                a('v_and_b32 v%d, 0xffff0000, v%d' % (X+1, X+1))
                a('v_pk_mul_f32 %s, %s, %s' % (P2(X), P2(X), P2(u0)))
                a('v_cvt_pk_bf16_f32 v%d, v%d, v%d' % (o, X, X+1))
            for hq in range(2):
                a('ds_write_b64 v%d, %s offset:%d' % (vw_, vr(O[rb*2+qq]+2*hq,2), rb*2560 + 16*(2*qq+hq)))
            if rb == 1 and qq == 0:
                a('s_waitcnt lgkmcnt(2)')
                for j in range(2):
                    a('buffer_store_dwordx4 %s, v%d, s[20:23], s%d offen%s' % (vr(O[4+j],4), vo, 24+j, GSM if fz else ''))
        for jj in range(2):
            j = 2*rb + jj
            a('ds_read_b128 %s, v%d offset:%d' % (vr(O[4+j],4), vr_, j*1280))
        if rb == 0: continue
    for j in range(2,4):
        a('s_waitcnt lgkmcnt(%d)' % (3-j))
        a('buffer_store_dwordx4 %s, v%d, s[20:23], s%d offen%s' % (vr(O[4+j],4), vo, 24+j, GSM if fz else ''))
    if fz: return R.hi
    if 't' in FL:
        a('s_memtime s[44:45]'); a('s_memrealtime s[46:47]')
        a('s_waitcnt lgkmcnt(0)')
        mksrd(a, 48, 256)
        a('s_sub_u32 s44, s44, s40'); a('s_sub_u32 s46, s46, s42')
        a('s_lshl_b32 s40, s2, 3'); a('s_add_u32 s40, s40, s3')
        a('s_cmp_ge_u32 s40, 16'); a('s_cbranch_scc1 %s_end' % name)
        a('s_lshl_b32 s40, s40, 3')
        a('v_mov_b32 v2, s44'); a('v_mov_b32 v3, s46'); a('v_mov_b32 v1, 0')
        a('buffer_store_dwordx2 v[2:3], v1, s[48:51], s40 offen')
    kend(a, name)
    return name, R.hi, '; @launch kernel=k4_kernel grid=(216,1,1) block=(512,1,1) lds=147456'

def gen_k5(a, fz=False):
    name = 'k5_kernel'
    R = Regs(1)
    if fz:
        a('s_mov_b32 s54, 1')
        a('s_branch k5_start')
        a.label('k4_idle')
        a('s_mov_b32 s54, 0')
        if WDW:
            for i in range(WDS): a('s_sleep 32')
            for i in range(33):
                if i % 4 == 0 and i: a('s_add_u32 s12, s12, 4096')
                a('buffer_load_dwordx4 v[%d:%d], v206, s[8:11], s12 offen offset:%d' % (208+4*(i&1), 211+4*(i&1), 1024*(i%4)))
        a.label('k5_start')
        ldptr(a, 12, 56)
        a('s_lshl_b32 s2, s53, 3')
        a('s_add_u32 s2, s2, s52')
        a('s_mov_b32 s16, s48'); a('s_mov_b32 s17, s49')
    else:
        kstart(a, name, 256)
        ldptr(a, 12, 56); ldptr(a, 16, 72)
    l = R.a(); l15 = R.a(); g = R.a(); t = R.a(); t2 = R.a(); t3 = R.a()
    a('v_lshrrev_b32 v%d, 6, v0' % l)
    a('v_readfirstlane_b32 s3, v%d' % l)
    a('v_and_b32 v%d, 63, v0' % l)
    a('v_and_b32 v%d, 15, v0' % l15)
    a('v_bfe_u32 v%d, v0, 4, 2' % g)
    a('s_and_b32 s4, s2, 7')
    a('s_lshl_b32 s4, s4, 2')
    a('s_bfe_u32 s5, s2, 0x20003')
    a('s_add_u32 s4, s4, s5')
    a('s_lshr_b32 s5, s2, 5')
    a('s_mul_i32 s6, s5, 160')
    vd = R.a(5)
    for i in range(5):
        a('v_add_u32 v%d, %d, v%d' % (t, 64*i, l))
        a('v_mul_u32_u24 v%d, 52429, v%d' % (t2, t))
        a('v_lshrrev_b32 v%d, 19, v%d' % (t2, t2))
        a('v_mul_u32_u24 v%d, 10, v%d' % (t3, t2))
        a('v_sub_u32 v%d, v%d, v%d' % (t, t, t3))
        a('v_lshrrev_b32 v%d, 1, v%d' % (t3, t2))
        a('v_and_b32 v%d, 4, v%d' % (t3, t3))
        a('v_xor_b32 v%d, v%d, v%d' % (t2, t2, t3))
        a('v_mul_u32_u24 v%d, 160, v%d' % (t2, t2))
        a('v_lshl_add_u32 v%d, v%d, 4, v%d' % (vd+i, t, t2))
    vg = R.a(8)
    a('v_lshrrev_b32 v%d, 3, v%d' % (t, l))
    a('v_lshrrev_b32 v%d, 4, v%d' % (t3, l))
    a('v_xor_b32 v%d, v%d, v%d' % (t3, t3, l))
    a('v_and_b32 v%d, 7, v%d' % (t3, t3))
    for j in range(8):
        a('s_add_u32 s24, s3, %d' % (j >> 1))
        a('s_and_b32 s24, s24, 3')
        a('s_lshl_b32 s24, s24, 4')
        a('s_add_u32 s24, s24, %d' % (8*(j&1)))
        a('v_add_u32 v%d, s24, v%d' % (t2, t))
        a('v_mul_u32_u24 v%d, 3456, v%d' % (t2, t2))
        if j & 1: a('v_xor_b32 v%d, 4, v%d' % (vg+j, t3))
        else: a('v_mov_b32 v%d, v%d' % (vg+j, t3))
        a('v_lshl_add_u32 v%d, v%d, 4, v%d' % (vg+j, vg+j, t2))
    a('s_mul_i32 s24, s4, %d' % (64*3456))
    a('s_mul_i32 s25, s3, 896')
    a('s_add_u32 s24, s24, s25')
    a('s_mul_i32 s25, s5, 1728')
    a('s_mul_i32 s26, s3, 448')
    a('s_add_u32 s25, s25, s26')
    a('s_mul_i32 s25, s25, 160')
    a('s_mul_i32 s26, s3, 36864')
    a('s_and_b32 s32, s4, 3')
    a('s_lshl_b32 s32, s32, 1')
    a('s_add_u32 s32, s32, s5')
    a('s_cmp_ge_u32 s32, 7')
    a('s_cselect_b32 s33, 7, 0')
    a('s_sub_u32 s32, s32, s33')
    if 'm' in FL: a('s_mov_b32 s32, 0')
    a('s_mov_b32 s35, s32')
    a('s_cmp_eq_u32 s3, 3')
    a('s_cselect_b32 s36, 6, 99')
    vh = R.a()
    a('s_lshl_b32 s27, s4, 6')
    a('s_lshl_b32 s28, s3, 4')
    a('s_add_u32 s27, s27, s28')
    a('v_add_u32 v%d, s27, v%d' % (t, l15))
    a('v_mul_u32_u24 v%d, 1280, v%d' % (t, t))
    a('v_lshl_add_u32 v%d, v%d, 3, v%d' % (vh, g, t))
    a('s_waitcnt lgkmcnt(0)')
    mksrd(a, 20, XB, H_OFF, 16)
    mksrd(a, 8, WDB, WDP_OFF, 16)
    mksrd(a, 16, GUB, GU_OFF)
    mksrd(a, 12, XB)
    def loads(s, part='gw'):
        if 'a' in FL: return
        a('s_mul_i32 s33, s32, 10240')
        a('s_add_u32 s33, s33, s25')
        a('s_add_u32 s37, s33, 5120')
        a('s_lshl_b32 s34, s32, 7')
        a('s_add_u32 s34, s34, s24')
        for j in range(8):
            if 'x' in FL or 'g' not in part: break
            a('s_add_u32 m0, s26, %d' % ((s % 2)*18432 + 10240 + j*1024))
            a('buffer_load_dwordx4 v%d, s[16:19], s34 offen lds' % (vg+j) + MOD)
        for i in range(10):
            if 'w' in FL or 'w' not in part: break
            a('s_add_u32 m0, s26, %d' % ((s % 2)*18432 + i*1024))
            a('buffer_load_dwordx4 v%d, s[8:11], s%d offen lds' % (vd+i%5, 33 if i < 5 else 37) + MOD)
        a('s_add_u32 s32, s32, 1')
        a('s_cmp_eq_u32 s32, 7')
        a('s_cselect_b32 s32, 0, s32')
    if not fz:
        loads(0); loads(1)
    vq = R.a(2)
    a('v_bfe_u32 v%d, v%d, 2, 2' % (t, l))
    a('v_lshl_add_u32 v%d, v%d, 3, v%d' % (t, g, t))
    a('v_and_b32 v%d, 1, v%d' % (t2, g))
    a('v_lshl_add_u32 v%d, v%d, 2, v%d' % (t3, t2, t))
    a('v_xor_b32 v%d, 1, v%d' % (t2, t2))
    a('v_lshl_add_u32 v%d, v%d, 2, v%d' % (t, t2, t))
    a('v_and_b32 v%d, 3, v%d' % (t2, l))
    a('v_lshlrev_b32 v%d, 3, v%d' % (t2, t2))
    a('v_add_u32 v%d, s26, v%d' % (t2, t2))
    a('v_mul_u32_u24 v%d, 160, v%d' % (t3, t3))
    a('v_mul_u32_u24 v%d, 160, v%d' % (t, t))
    a('v_add_u32 v%d, v%d, v%d' % (vq, t3, t2))
    a('v_add_u32 v%d, v%d, v%d' % (vq+1, t, t2))
    vx = R.a(2)
    a('v_lshrrev_b32 v%d, 1, v%d' % (t, l15))
    a('v_xor_b32 v%d, v%d, v%d' % (t, t, g))
    a('v_lshlrev_b32 v%d, 7, v%d' % (t2, l15))
    a('v_add_u32 v%d, s26, v%d' % (t2, t2))
    a('v_lshl_add_u32 v%d, v%d, 4, v%d' % (vx, t, t2))
    a('v_xor_b32 v%d, 4, v%d' % (t, t))
    a('v_lshl_add_u32 v%d, v%d, 4, v%d' % (vx+1, t, t2))
    FW = [[R.a(4) for jt in range(5)] for b in range(2)]
    FG = [[R.a(4) for i in range(4)] for b in range(2)]
    acc = {(jt,i): R.a(4) for jt in range(5) for i in range(4)}
    if fz:
        fz_stamp(a)
        a('s_waitcnt vmcnt(0)')
        a('s_barrier')
        fz_stamp(a)
        a('s_cmp_ge_u32 s3, 4')
        a('s_cbranch_scc1 k3_kernel_end')
        a('s_cmp_eq_u32 s54, 0')
        a('s_cbranch_scc1 k5_aB_na')
        fz_arrive(a, 'k5_aB', 128)
    for jt in range(5):
        for i in range(4):
            for r in range(4): a('v_mov_b32 v%d, 0' % (acc[jt,i]+r))
    hh = R.a(10)
    def treads(s, p):
        if 'b' in FL: return
        for i in range(4):
            a('ds_read_b128 %s, v%d offset:%d' % (vr(FG[p][i],4), vx+p, (s%2)*18432 + 10240 + i*2048))
        for jt in range(5):
            for q in range(2):
                a('ds_read_b64_tr_b16 %s, v%d offset:%d' % (vr(FW[p][jt]+2*q,2), vq+q, (s%2)*18432 + p*5120 + jt*32))
    def mm(s, p):
        if 'c' in FL: return
        a('s_cmp_eq_u32 s35, s36')
        a('s_cbranch_scc1 k5_sk%d_%d' % (s, p))
        for i in range(4):
            for jt in range(5):
                mfma16(a, acc[jt,i], FW[p][jt], FG[p][i], acc[jt,i], 'bf16')
        a.label('k5_sk%d_%d' % (s, p))
    if fz:
        loads(0, 'w'); loads(1, 'w')
        a('s_mov_b32 s32, s35')
        fz_wait(a, 'k5_wB', 128, 27)
        fz_stamp(a)
        loads(0, 'g'); loads(1, 'g')
        a('s_waitcnt vmcnt(8)')
        fz_stamp(a)
    else:
        a('s_waitcnt vmcnt(18)')
    treads(0, 0)
    for s in range(7):
        a('s_waitcnt lgkmcnt(0)')
        treads(s, 1)
        mm(s, 0)
        a('s_waitcnt lgkmcnt(0)')
        if s + 2 <= 6: loads(s+2)
        if s == 5:
            for jt in range(5):
                a('buffer_load_dwordx2 %s, v%d, s[20:23], s6 offen offset:%d' % (vr(hh+2*jt,2), vh, 32*jt))
        if s < 6:
            a('s_waitcnt vmcnt(%d)' % (18 if s <= 4 else 5))
            treads(s+1, 0)
        mm(s, 1)
        a('s_add_u32 s35, s35, 1')
        a('s_cmp_eq_u32 s35, 7')
        a('s_cselect_b32 s35, 0, s35')
    if fz: fz_stamp(a)
    la = R.a(); lr = R.a(3)
    a('v_lshlrev_b32 v%d, 4, v%d' % (t, l))
    a('v_add_u32 v%d, s26, v%d' % (la, t))
    for d in range(1,4):
        a('s_sub_u32 s28, s3, %d' % d)
        a('s_and_b32 s28, s28, 3')
        a('s_mul_i32 s28, s28, 36864')
        a('v_add_u32 v%d, s28, v%d' % (lr+d-1, t))
    for i in range(1,4):
        for jt in range(5):
            a('ds_write_b128 v%d, %s offset:%d' % (la, vr(acc[jt,i],4), ((i-1)*5+jt)*1024))
    a('s_waitcnt lgkmcnt(0)')
    a('s_barrier')
    for d in range(1,4):
        for jt in range(5):
            a('ds_read_b128 %s, v%d offset:%d' % (vr(acc[jt,d],4), lr+d-1, ((d-1)*5+jt)*1024))
    for d in range(1,4):
        a('s_waitcnt lgkmcnt(%d)' % (5*(3-d)))
        for jt in range(5):
            for r in range(4):
                a('v_add_f32 v%d, v%d, v%d' % (acc[jt,0]+r, acc[jt,0]+r, acc[jt,d]+r))
    a('s_waitcnt vmcnt(0)')
    for jt in range(5):
        A = acc[jt,0]
        for h in range(2):
            a('v_cvt_pk_bf16_f32 v%d, v%d, v%d' % (t, A+2*h, A+2*h+1))
            a('v_lshlrev_b32 v%d, 16, v%d' % (A+2*h, t))
            a('v_and_b32 v%d, 0xffff0000, v%d' % (A+2*h+1, t))
            a('v_lshlrev_b32 v%d, 16, v%d' % (t, hh+2*jt+h))
            a('v_and_b32 v%d, 0xffff0000, v%d' % (t2, hh+2*jt+h))
            a('v_add_f32 v%d, v%d, v%d' % (A+2*h, A+2*h, t))
            a('v_add_f32 v%d, v%d, v%d' % (A+2*h+1, A+2*h+1, t2))
            a('v_cvt_pk_bf16_f32 v%d, v%d, v%d' % (hh+2*jt+h, A+2*h, A+2*h+1))
        a('buffer_store_dwordx2 %s, v%d, s[12:15], s6 offen offset:%d' % (vr(hh+2*jt,2), vh, 32*jt))
    if fz:
        if FZT: a('s_waitcnt vmcnt(0)')
        fz_dump(a)
        return R.hi
    kend(a, name)
    return name, R.hi, '; @launch kernel=k5_kernel grid=(256,1,1) block=(256,1,1) lds=147456'

def gen_k345(a):
    from k1 import gen_k3
    h3 = gen_k3(a, True)
    h4 = gen_k4(a, True)
    h5 = gen_k5(a, True)
    assert max(h3, h4, h5) <= 204
    kend(a, 'k3_kernel')
    return 'k3_kernel', 216, '; @launch kernel=k3_kernel grid=(256,1,1) block=(512,1,1) lds=147456'
```

```python
import numpy as np
lane = np.arange(64); l15 = lane & 15; g = (lane >> 4) & 3
def pk(lo, hi):
    lo = np.asarray(lo, np.float64).astype(np.float32).astype(np.float16).view(np.uint16).astype(np.uint32)
    hi = np.asarray(hi, np.float64).astype(np.float32).astype(np.float16).view(np.uint16).astype(np.uint32)
    return lo | (hi << 16)
def f32(x): return np.asarray(x, np.float64).astype(np.float32).view(np.uint32)
def cs(p, N):
    p = np.asarray(p) % N
    c = np.cos(2*np.pi*p/N); s = np.sin(2*np.pi*p/N)
    c[np.abs(c) < 1e-15] = 0.0; s[np.abs(s) < 1e-15] = 0.0
    return c, s
def quads(regs):
    r = np.stack(regs).reshape(-1, 4, 64).transpose(0, 2, 1)
    return np.ascontiguousarray(r)

def tab_k3():
    Bre = []; Bim = []; twc = [None]*8; tws = [None]*8
    for i in range(4):
        p = (4*g+i)*l15
        c, s = cs(p, 16); c *= .25; s *= .25
        Bre.append(pk(c, -s)); Bim.append(pk(s, c))
        c, s = cs(p, 320); twc[i] = f32(c); tws[i] = f32(s)
        c, s = cs(p+16*l15, 320); twc[4+i] = f32(c); tws[4+i] = f32(s)
    H = []
    for ob in range(2):
        n1 = 5*(l15 >> 2) + ((l15 & 3) if ob == 0 else 4)
        C = []; S = []
        for j in range(8):
            k1 = 16*(j >> 2) + 4*g + (j & 3)
            c, s = cs(k1*n1, 20)
            if j >= 4: c = c*(g == 0); s = s*(g == 0)
            C.append(c); S.append(s)
        H += [pk(C[2*jj], C[2*jj+1]) for jj in range(4)]
        H += [pk(S[2*jj], S[2*jj+1]) for jj in range(4)]
    return quads(Bre + Bim + twc + tws + H)

def tab_k1():
    B0 = {}; B1 = {}; twc = [None]*8; tws = [None]*8
    for cb in range(2):
        k1 = 16*cb + l15
        for i in range(5):
            c, s = cs((5*g+i)*k1, 20); c *= .25; s *= .25
            re = pk(c, s); im = pk(-s, c)
            if i < 4: B0.setdefault((cb,0), []).append(re); B0.setdefault((cb,1), []).append(im)
            else: B1[cb,0] = re; B1[cb,1] = im
        for r in range(4):
            c, s = cs((4*g+r)*k1, 320); twc[4*cb+r] = f32(c); tws[4*cb+r] = f32(s)
    C = []; S = []
    for j in range(4):
        c, s = cs((4*g+j)*l15, 16); C.append(c*.25); S.append(s*.25)
    Are = [pk(C[0],C[1]), pk(C[2],C[3]), pk(S[0],S[1]), pk(S[2],S[3])]
    Aim = [pk(-S[0],-S[1]), pk(-S[2],-S[3]), Are[0], Are[1]]
    z = np.zeros(64, np.uint32)
    b1 = [B1[0,0], z, B1[0,1], z, B1[1,0], z, B1[1,1], z]
    return quads(B0[0,0] + B0[0,1] + B0[1,0] + B0[1,1] + b1 + Are + Aim + twc + tws)

def emit(name, arr):
    w = arr.reshape(-1)
    out = ['.p2align 8', '.type %s,@object' % name, name + ':']
    for i in range(0, len(w), 8):
        out.append('.long ' + ','.join('0x%x' % x for x in w[i:i+8]))
    out.append('.size %s, %d' % (name, 4*len(w)))
    return '\n'.join(out) + '\n'
```

```python
import sys
sys.path.insert(0, 'gen')
from common import *
from k1 import gen_k1, gen_k3
from k2 import gen_k2
gens = [gen_k1, gen_k2, gen_k3]
try:
    from k45 import gen_k4, gen_k5
    gens += [gen_k4, gen_k5]
    if 'U' not in os.environ.get('FL',''):
        from k45 import gen_k345
        gens = [gen_k1, gen_k2, gen_k345]
except ImportError:
    pass
a = Asm()
info = [g(a) for g in gens]
ref = open('sequential_preLN__spectral_gfnet__geglu_ffn__prompt.s.ref').read().split('\n')
hdr = [l for l in ref if l.startswith(';') and not l.startswith('; @launch')]
out = '\n'.join(hdr) + '\n' + '\n'.join(i[2] for i in info) + '\n'
import tables
out += '.amdgcn_target "amdgcn-amd-amdhsa--gfx950"\n.text\n'
out += tables.emit('ctab1', tables.tab_k1()) + tables.emit('ctab3', tables.tab_k3())
out += a.text()
out += '.section .rodata,"a"\n' + ''.join(kdesc(i[0], i[1]) for i in info)
dst = sys.argv[1] if len(sys.argv) > 1 else 'sequential_preLN__spectral_gfnet__geglu_ffn__prompt.s'
open(dst, 'w').write(out)
print([(i[0], i[1]) for i in info], 'nops', a.nnop, 'lines', len(a.lines))
```
